```python
import torch

def _softmax(x, axis=-1):
    return torch.softmax(x, dim=axis)
def _gelu(x):
    return torch.nn.functional.gelu(x, approximate="tanh")
def _silu(x):
    return torch.nn.functional.silu(x)
def _sigmoid(x):
    return torch.sigmoid(x)
def _layernorm(x, axis=-1, eps=1e-5):
    m = x.mean(dim=axis, keepdim=True)
    v = x.var(dim=axis, keepdim=True, unbiased=False)
    return (x - m) / torch.sqrt(v + eps)
def _scatter_add(tgt, idx, src, axis=0):
    return tgt.clone().index_add_(axis, idx, src)
def _segment_sum(src, seg, n):
    out = torch.zeros((n,) + src.shape[1:], dtype=src.dtype)
    return out.index_add_(0, seg, src)
def _pad(x, pw):
    flat = tuple(v for pair in reversed(pw) for v in pair)
    return torch.nn.functional.pad(x, flat)

kernel_name = 'standalone__mha_block_cached__sampling'

def setup_inputs():

    _w = (lambda a: (lambda t: t.to(torch.bfloat16) if t.is_floating_point() else t)(torch.as_tensor(a)))
    B, Sq, D = 8, 1, 640
    H, Sk, Dh = 32, 4096, 192
    return {
        "x": _w((lambda *s: torch.randn(*s, dtype=torch.bfloat16) * 0.8)(B, Sq, D)),
        "k_cache": _w((lambda *s: torch.randn(*s, dtype=torch.bfloat16) * 0.8)(B, H, Sk, Dh)),
        "v_cache": _w((lambda *s: torch.randn(*s, dtype=torch.bfloat16) * 0.05)(B, H, Sk, Dh)),
        "wq": _w((lambda *s: torch.randn(*s, dtype=torch.bfloat16) * 0.8)(D, H * Dh) * (D ** -0.5)),
        "wo": _w((lambda *s: torch.randn(*s, dtype=torch.bfloat16) * 0.05)(H * Dh, D) * ((H * Dh) ** -0.5)),
    }

def reference(x, k_cache, v_cache, wq, wo):
    B, Sq, D = x.shape
    H, Dh = 32, 192
    q = (lambda x, *d: x.permute(*d))((x @ wq).reshape(B, Sq, H, Dh), 0, 2, 1, 3)
    scores = torch.einsum("bhqd,bhkd->bhqk", q, k_cache) * (Dh ** -0.5)
    p = _softmax(scores, axis=-1)
    o = torch.einsum("bhqk,bhkd->bhqd", p, v_cache)
    return (lambda x, *d: x.permute(*d))(o, 0, 2, 1, 3).reshape(B, Sq, H * Dh) @ wo
```

```python
import struct, math, sys, json

NAME = "standalone__mha_block_cached__sampling_kernel"
ITEM = 4096 * 384
CB = 6144
W_CNT, W_Q, W_P, W_R, W_END = 0x0, 0x10000, 0x30000, 0x70000, 0x110000
W_STAMP = 0x200000
SLOT = 1552
L_SLOT, L_QP, L_Q16, L_AR, L_WO = 0, 12416, 18560, 20096, 26496
L_END = L_WO + 30720
AROW = 400

def f32(x):
    return "0x%08x" % struct.unpack("<I", struct.pack("<f", x))[0]

def gen(D=2, ndyn=64, steal=1, stamp=0, rot=1, kvf="nt", wqf="", wof="", order="mix", hs="sc0 sc1"):
    out = []
    A = lambda s: out.append("    " + s)
    Lb = lambda s: out.append(s + ":")
    C = lambda s: out.append("    ; " + s)
    nstat = 256 - ndyn
    spw = nstat // 4
    VM = 12 * D - 6
    sWV, sB, sH, sPAR = "s3", "s40", "s41", "s42"
    sOFF, sLEFT, sPH, sCLM = "s43", "s44", "s45", "s46"
    sIDX, sROT, sROTP, sCUR, sC, sRET, sT0, sT1, sT2, sSPIN = "s47", "s60", "s61", "s62", "s63", "s64", "s65", "s66", "s67", "s68"
    sSELLO, sSELHI = "s69", "s70"
    TAG = lambda s: f"s{56+s}"
    KS, VS, WS, TS, XS = "s[20:23]", "s[24:27]", "s[28:31]", "s[32:35]", "s[36:39]"
    vKO, vVO = "v1", "v2"
    M = ["v3", "v4", "v5", "v6"]
    vMC, vM, vL = "v7", "v8", "v9"
    vDA, vDB = "v10", "v11"
    ACC = 12
    Q, Q2 = 24, 36
    vS0, vS1, vT, vU = "v48", "v49", "v50", "v51"
    A0, A1 = 52, 56
    vP0, vP1, vW, vX = "v60", "v61", "v62", "v63"
    RING = 64
    R4 = lambda r: f"v[{r}:{r+3}]"
    R2 = lambda r: f"v[{r}:{r+1}]"
    NST = [0]
    def st(i):
        if stamp:
            A(f"s_memrealtime s[{80+2*i}:{81+2*i}]")
            NST[0] = max(NST[0], i + 1)

    out.append(f"; @launch grid=(256,1,1) block=(256,1,1) lds={L_END}")
    out.append('.amdgcn_target "amdgcn-amd-amdhsa--gfx950"')
    out.append(".text")
    out.append(f".globl {NAME}")
    out.append(".p2align 8")
    out.append(f".type {NAME},@function")
    Lb(NAME)
    A("s_cmp_ge_u32 s2, 256")
    A("s_cbranch_scc1 L_end")
    A("s_load_dwordx16 s[4:19], s[0:1], 0")
    st(0)
    A("v_lshrrev_b32 v1, 6, v0")
    A("v_and_b32 v0, 63, v0")
    A(f"v_readfirstlane_b32 {sWV}, v1")
    A(f"s_lshr_b32 {sB}, s2, 5")
    A(f"s_and_b32 {sH}, s2, 31")
    C("lane offsets: K rows are read 8 lanes per key, V and wq rows 16 lanes per 256 bytes")
    A("v_lshrrev_b32 v48, 3, v0")
    A("v_and_b32 v49, 7, v0")
    A("v_lshrrev_b32 v50, 4, v0")
    A("v_and_b32 v51, 15, v0")
    A(f"v_mul_u32_u24 {vKO}, 384, v48")
    A(f"v_lshl_add_u32 {vKO}, v49, 4, {vKO}")
    A(f"v_mul_u32_u24 {vVO}, 768, v50")
    A(f"v_lshl_add_u32 {vVO}, v51, 4, {vVO}")
    A("v_mul_u32_u24 v60, 491520, v50")
    A("v_lshl_add_u32 v60, v51, 4, v60")
    A("v_add_u32 v62, 245888, v60")
    A("v_add_u32 v61, 256, v60")
    A("v_add_u32 v52, 245632, v60")
    A("v_cmp_gt_u32 vcc, 8, v51")
    A("v_mul_u32_u24 v63, 40, v48")
    A(f"s_mul_i32 {sT0}, {sB}, 1280")
    A("v_cndmask_b32 v61, v52, v61, vcc")
    A(f"s_mul_i32 {sT1}, {sWV}, 320")
    A(f"s_add_u32 {sT0}, {sT0}, {sT1}")
    A(f"s_mul_i32 {sT1}, {sWV}, {160*12288}")
    A(f"s_mul_i32 {sT2}, {sH}, 384")
    A(f"s_add_u32 {sT1}, {sT1}, {sT2}")
    A(f"s_mul_i32 s72, s2, {ITEM}")
    A(f"s_mul_hi_u32 s73, s2, {ITEM}")
    A(f"s_mul_i32 {sROT}, s2, {4*rot}")
    A(f"s_add_u32 {sIDX}, {sROT}, {sWV}")
    A(f"s_and_b32 {sOFF}, {sIDX}, 255")
    A(f"s_mul_i32 {sOFF}, {sOFF}, {CB}")
    A("s_mov_b32 s35, 0x20000")
    A("s_mov_b32 s39, 0x20000")
    A("s_mov_b32 s23, 0x20000")
    A("s_mov_b32 s27, 0x20000")
    A("s_mov_b32 s31, 0x20000")
    A(f"s_mov_b32 s22, {ITEM}")
    A(f"s_mov_b32 s26, {ITEM}")
    A(f"s_mov_b32 s30, {W_END if not stamp else W_STAMP + 0x20000}")
    A("s_mov_b32 s38, 10240")
    A(f"s_sub_u32 s34, {640*12288}, {sT1}")
    A("s_waitcnt lgkmcnt(0)")
    A("s_mov_b32 s36, s4"); A("s_mov_b32 s37, s5")
    A(f"s_add_u32 s32, s10, {sT1}"); A("s_addc_u32 s33, s11, 0")
    A("s_add_u32 s20, s6, s72"); A("s_addc_u32 s21, s7, s73")
    A("s_add_u32 s24, s8, s72"); A("s_addc_u32 s25, s9, s73")
    XR = 36
    A(f"buffer_load_dwordx4 {R4(XR)}, v63, {XS}, {sT0} offen")
    A(f"buffer_load_dwordx4 {R4(XR+4)}, v63, {XS}, {sT0} offen offset:16")
    A(f"buffer_load_dwordx2 {R2(XR+8)}, v63, {XS}, {sT0} offen offset:32")

    def issue_k(s):
        r = RING + 48 * s
        for u in range(2):
            for m in range(3):
                A(f"buffer_load_dwordx4 {R4(r + 12*u + 4*m)}, {vKO}, {KS}, {sOFF} offen offset:{3072*u + 128*m} {kvf}")
    def issue_v(s):
        r = RING + 48 * s + 24
        for u in range(2):
            for m in range(3):
                A(f"buffer_load_dwordx4 {R4(r + 12*u + 4*m)}, {vVO}, {VS}, {sOFF} offen offset:{3072*u + 256*m} {kvf}")
    def step_static():
        A(f"s_add_u32 {sIDX}, {sIDX}, 4")
        A(f"s_and_b32 {sOFF}, {sIDX}, 255")
        A(f"s_mul_i32 {sOFF}, {sOFF}, {CB}")
    def issue_wq(u):
        A(f"s_mov_b32 s72, {u*12288}")
        for m, vo in enumerate(("v60", "v61", "v62")):
            A(f"buffer_load_dwordx4 a[{12*u+4*m}:{12*u+4*m+3}], {vo}, {TS}, s72 offen {wqf}")

    seq = []
    ring_items = []
    for s in range(D):
        ring_items += [("k", s), ("v", s)]
    if order == "mix":
        per = 20 // len(ring_items)
        u = 0
        for it in ring_items:
            for _ in range(per):
                seq.append(("w", u)); u += 1
            seq.append(it)
        while u < 20:
            seq.insert(len(seq) - 1, ("w", u)); u += 1
    elif order == "wfirst":
        seq = [("w", u) for u in range(20)] + ring_items
    elif order == "kfirst":
        seq = ring_items[:2] + [("w", u) for u in range(20)] + ring_items[2:]
    pos = {}
    n = 3
    for kind, i in seq:
        grp = 3 if kind == "w" else 6
        if n + grp > 57: A(f"s_waitcnt vmcnt({57 - grp})")
        if kind == "w":
            issue_wq(i); n += 3
        elif kind == "k":
            if i: step_static()
            issue_k(i); n += 6
        else:
            issue_v(i); n += 6
        pos[(kind, i)] = n
    total_issued = n

    C("set-up that overlaps the loads in flight")
    A("s_mov_b32 s28, s18"); A("s_mov_b32 s29, s19")
    A(f"s_lshr_b32 {sPAR}, s2, 2"); A(f"s_and_b32 {sPAR}, {sPAR}, 6"); A(f"s_or_b32 {sPAR}, {sPAR}, 1"); A(f"s_xor_b32 {sPAR}, {sPAR}, s2")
    A(f"s_mul_i32 {sROTP}, {sPAR}, {4*rot}")
    A(f"s_mul_i32 s72, {sPAR}, {ITEM}"); A(f"s_mul_hi_u32 s73, {sPAR}, {ITEM}")
    A("s_add_u32 s52, s6, s72"); A("s_addc_u32 s53, s7, s73")
    A("s_add_u32 s54, s8, s72"); A("s_addc_u32 s55, s9, s73")
    A("s_lshl_b32 s72, s2, 8"); A("s_add_u32 s48, s18, s72"); A("s_addc_u32 s49, s19, 0")
    A(f"s_lshl_b32 s72, {sPAR}, 8"); A("s_add_u32 s50, s18, s72"); A("s_addc_u32 s51, s19, 0")
    A(f"s_mov_b32 {sLEFT}, {spw - D + 1}")
    A(f"s_mov_b32 {sPH}, 0"); A(f"s_mov_b32 {sCUR}, 0"); A(f"s_mov_b32 {sCLM}, 0")
    for s in range(D): A(f"s_mov_b32 {TAG(s)}, 0")
    A(f"s_mov_b32 {sC}, {f32(192 ** -0.5 * math.log2(math.e))}")
    A(f"s_mov_b32 {sSELLO}, 0x01000100"); A(f"s_mov_b32 {sSELHI}, 0x03020302"); A("s_mov_b32 s71, 1")
    C("diagonal-operand masks: register r keeps element (lane&7) when (lane&7)>>1 == r")
    A("v_and_b32 v52, 1, v0")
    A("v_lshlrev_b32 v52, 4, v52")
    A("v_mov_b32 v53, 0xffff")
    A("v_lshlrev_b32 v52, v52, v53")
    A("v_lshrrev_b32 v53, 1, v49")
    for r in range(4):
        A(f"v_cmp_eq_u32 vcc, {r}, v53")
        A("s_nop 1")
        A(f"v_cndmask_b32 {M[r]}, 0, v52, vcc")
    C("LDS addresses of the accumulator dump")
    A("v_and_b32 v52, 1, v50")
    A("v_lshlrev_b32 v52, 4, v52")
    A("v_lshl_add_u32 v52, v51, 5, v52")
    A("v_cmp_gt_u32 vcc, 32, v0")
    A("v_add_u32 v53, 768, v52")
    A("v_add_u32 v54, 512, v52")
    A(f"v_cndmask_b32 {vDA}, v53, v52, vcc")
    A(f"v_mov_b32 {vDB}, v54")
    A(f"s_mul_i32 {sT0}, {sWV}, {SLOT}")
    A(f"s_mul_i32 {sT1}, {sWV}, 1536")
    A(f"s_add_u32 {sT1}, {sT1}, {L_QP}")
    A(f"v_add_u32 v60, {sT1}, {vDA}")
    A(f"v_add_u32 v61, {sT1}, {vDB}")
    A(f"v_add_u32 {vDA}, {sT0}, {vDA}")
    A(f"v_add_u32 {vDB}, {sT0}, {vDB}")
    for r in range(12): A(f"v_mov_b32 v{ACC+r}, 0")
    A(f"v_mov_b32 {vL}, 0")
    A(f"v_mov_b32 {vM}, {f32(-3.0e38)}")
    A(f"v_mul_f32 {vMC}, {sC}, {vM}")

    def dump_acc(va, vb, off):
        A("s_mov_b32 exec_hi, 0")
        A(f"ds_write_b128 {va}, {R4(ACC)} offset:{off}")
        A("s_mov_b32 exec_lo, 0"); A("s_mov_b32 exec_hi, -1")
        A(f"ds_write_b128 {va}, {R4(ACC+8)} offset:{off+256}")
        A("s_mov_b32 exec_lo, 0x00ff00ff"); A("s_mov_b32 exec_hi, 0xff00ff00")
        A(f"ds_write_b128 {vb}, {R4(ACC+4)} offset:{off}")
        A("s_mov_b64 exec, -1")
    C("the helper slot starts out empty")
    dump_acc(vDA, vDB, 4 * SLOT)
    A(f"v_mov_b32 v56, {vMC}"); A("v_mov_b32 v57, 0"); A(f"v_mov_b32 v58, {sT0}")
    A(f"ds_write_b64 v58, v[56:57] offset:{4*SLOT + 1536}")

    C("wave 3 marks this workgroup's outgoing hand-off words as empty and clears its chunk counter")
    A(f"s_cmp_lg_u32 {sWV}, 3")
    A("s_cbranch_scc1 L_noinit")
    for r in range(4): A(f"v_mov_b32 v{Q+r}, -1")
    A("v_lshrrev_b32 v56, 2, v0"); A("v_and_b32 v56, 7, v56"); A("v_mul_u32_u24 v56, 81920, v56")
    A("v_lshrrev_b32 v57, 5, v0"); A("v_lshl_add_u32 v56, v57, 11, v56")
    A("v_and_b32 v57, 3, v0"); A("v_lshl_add_u32 v56, v57, 4, v56")
    A(f"s_mul_i32 {sT0}, {sB}, 10240"); A(f"s_lshl_b32 {sT1}, {sH}, 6"); A(f"s_add_u32 {sT0}, {sT0}, {sT1}"); A(f"s_add_u32 {sT0}, {sT0}, {W_R}")
    A(f"buffer_store_dwordx4 {R4(Q)}, v56, {WS}, {sT0} offen {hs}")
    A(f"s_add_u32 {sT0}, {sT0}, 4096")
    A(f"buffer_store_dwordx4 {R4(Q)}, v56, {WS}, {sT0} offen {hs}")
    A(f"s_add_u32 {sT0}, {sT0}, 4096")
    A("s_mov_b32 exec_hi, 0")
    A(f"buffer_store_dwordx4 {R4(Q)}, v56, {WS}, {sT0} offen {hs}")
    A("s_mov_b64 exec, -1")
    def p_slot(dst, hreg, t):
        A(f"s_lshl_b32 {dst}, {hreg}, 3"); A(f"s_add_u32 {dst}, {dst}, {sB}"); A(f"s_lshl_b32 {dst}, {dst}, 10"); A(f"s_add_u32 {dst}, {dst}, {W_P + 512*t}")
    p_slot(sT0, sH, 0)
    A(f"s_and_b32 {sT2}, {sPAR}, 31")
    p_slot(sT1, sT2, 1)
    A(f"v_mov_b32 v56, {sT0}"); A(f"v_mov_b32 v57, {sT1}")
    A("v_cmp_gt_u32 vcc, 32, v0")
    A("v_and_b32 v58, 31, v0")
    A("s_nop 0")
    A("v_cndmask_b32 v56, v57, v56, vcc")
    A("v_lshl_add_u32 v56, v58, 4, v56")
    A(f"buffer_store_dwordx4 {R4(Q)}, v56, {WS}, 0 offen {hs}")
    A("s_lshl_b32 s72, s2, 8")
    A("v_mov_b32 v56, 0")
    A("s_mov_b64 exec, 1")
    A(f"buffer_store_dword v56, v56, {WS}, s72 offen {hs}")
    A("s_mov_b64 exec, -1")
    Lb("L_noinit")

    C("q = x[b] @ wq[:, head]: the wave's 160 rows, 8 rows per step")
    for u in range(20):
        need = pos[("w", u)]
        w = min(63, total_issued - need)
        a = A0 if u % 2 == 0 else A1
        if u == 0:
            A(f"s_waitcnt vmcnt({min(63, total_issued - 3)})")
        A(f"v_perm_b32 {vT}, v{XR + u//2}, v{XR + u//2}, {sSELLO if u % 2 == 0 else sSELHI}")
        for r in range(4): A(f"v_and_b32 v{a+r}, {vT}, {M[r]}")
        A(f"s_waitcnt vmcnt({w})")
        A("s_nop 0")
        for m in range(3):
            A(f"v_mfma_f32_16x16x32_bf16 {R4(ACC+4*m)}, {R4(a)}, a[{12*u+4*m}:{12*u+4*m+3}], {R4(ACC+4*m)}")
    A("v_lshlrev_b32 v56, 4, v0")
    A(f"s_mul_i32 {sT0}, {sWV}, 384")
    A(f"s_add_u32 {sT0}, {sT0}, {L_Q16}")
    A(f"v_lshl_add_u32 v57, v0, 3, {sT0}")
    A(f"v_lshl_add_u32 v58, v49, 4, {sT0}")
    A("s_nop 4")
    dump_acc("v60", "v61", 0)
    A("s_waitcnt lgkmcnt(0)")
    A("s_barrier")
    A("s_mov_b32 exec_hi, 0xffff")
    T = 24
    tmp = [24, 28, 32, 36, 40, 44, 12, 16]
    for i in range(8):
        A(f"ds_read_b128 {R4(tmp[i])}, v56 offset:{L_QP + 768*i}")
    for i in range(1, 8):
        A(f"s_waitcnt lgkmcnt({7-i})")
        for k in range(4): A(f"v_add_f32 v{24+k}, v{24+k}, v{tmp[i]+k}")
    A("v_cvt_pk_bf16_f32 v24, v24, v25")
    A("v_cvt_pk_bf16_f32 v25, v26, v27")
    A("ds_write_b64 v57, v[24:25]")
    A("s_mov_b32 exec_hi, -1")
    for r in range(12): A(f"v_mov_b32 v{ACC+r}, 0")
    A("s_waitcnt lgkmcnt(0)")
    for m in range(3):
        A(f"ds_read_b128 {R4(Q+4*m)}, v58 offset:{128*m}")
    C("wo tiles of this workgroup's 80 output columns go to LDS")
    A(f"s_mul_i32 {sT0}, {sH}, {192*1280}"); A(f"s_mul_i32 {sT1}, {sB}, 160"); A(f"s_add_u32 {sT0}, {sT0}, {sT1}")
    A(f"s_add_u32 s32, s12, {sT0}"); A("s_addc_u32 s33, s13, 0"); A(f"s_sub_u32 s34, {6144*1280}, {sT0}")
    A("v_lshrrev_b32 v56, 1, v0"); A("v_mul_u32_u24 v56, 1280, v56"); A("v_and_b32 v57, 1, v0"); A("v_lshl_add_u32 v56, v57, 4, v56")
    A(f"s_lshl_b32 {sT0}, {sWV}, 5")
    A(f"s_mul_i32 {sT1}, {sWV}, 6144"); A(f"s_add_u32 {sT1}, {sT1}, {L_WO}")
    def wo_tile():
        for m in range(6):
            A(f"s_add_u32 m0, {sT1}, {1024*m}")
            A(f"s_add_u32 {sT2}, {sT0}, {40960*m}")
            A(f"buffer_load_dwordx4 v56, {TS}, {sT2} offen {wof} lds")
    wo_tile()
    A("s_waitcnt lgkmcnt(0)")
    A(f"s_cmp_lg_u32 {sWV}, 3")
    A("s_cbranch_scc1 L_nopub")
    A(f"s_mov_b32 {sT0}, 128"); A(f"s_mov_b32 {sT1}, {L_WO + 4*6144}")
    wo_tile()
    A("s_lshl_b32 s72, s2, 9"); A(f"s_add_u32 s72, s72, {W_Q}")
    A("v_lshlrev_b32 v56, 4, v0")
    A("s_mov_b64 exec, 0xff")
    for m in range(3):
        A(f"buffer_store_dwordx4 {R4(Q+4*m)}, v56, {WS}, s72 offen offset:{128*m} {hs}")
    A("s_mov_b64 exec, -1")
    Lb("L_nopub")
    st(1)

    out.append(".p2align 6")
    Lb("L_loop")
    for s in range(D):
        r = RING + 48 * s
        A(f"s_cmp_lg_u32 {TAG(s)}, {sCUR}")
        A(f"s_cbranch_scc1 L_sw{s}")
        Lb(f"L_go{s}")
        A(f"v_mov_b32 {vS0}, 0"); A(f"v_mov_b32 {vS1}, 0")
        A(f"s_waitcnt vmcnt({VM})")
        for k in range(12):
            A(f"v_dot2c_f32_bf16 {vS0}, v{r+k}, v{Q+k}")
            A(f"v_dot2c_f32_bf16 {vS1}, v{r+12+k}, v{Q+k}")
        A(f"s_sub_u32 {sLEFT}, {sLEFT}, 1")
        A(f"s_cmp_lt_i32 {sLEFT}, 2")
        A(f"s_cbranch_scc1 L_dyn{s}")
        A(f"s_cmp_eq_u32 {sLEFT}, {spw - D - 4}")
        A(f"s_cbranch_scc1 L_sig{s}")
        Lb(f"L_stat{s}")
        step_static()
        Lb(f"L_adv{s}")
        issue_k(s)
        for ctl in ("quad_perm:[1,0,3,2]", "quad_perm:[2,3,0,1]", "row_half_mirror"):
            A(f"v_add_f32_dpp {vS0}, {vS0}, {vS0} {ctl} row_mask:0xf bank_mask:0xf")
            A(f"v_add_f32_dpp {vS1}, {vS1}, {vS1} {ctl} row_mask:0xf bank_mask:0xf")
            if ctl != "row_half_mirror": A("s_nop 0")
        A(f"v_max_f32 {vT}, {vS0}, {vS1}")
        A(f"v_cmp_gt_f32 vcc, {vT}, {vM}")
        A(f"s_cbranch_vccnz L_resc{s}")
        Lb(f"L_back{s}")
        A(f"v_fma_f32 {vP0}, {vS0}, {sC}, -{vMC}")
        A(f"v_fma_f32 {vP1}, {vS1}, {sC}, -{vMC}")
        A(f"v_exp_f32 {vP0}, {vP0}")
        A(f"v_exp_f32 {vP1}, {vP1}")
        A("s_nop 0")
        A(f"v_cvt_pk_bf16_f32 {vT}, {vP0}, {vP0}")
        A(f"v_cvt_pk_bf16_f32 {vU}, {vP1}, {vP1}")
        A(f"v_add_f32 {vL}, {vL}, {vP0}")
        for k in range(4): A(f"v_and_b32 v{A0+k}, {vT}, {M[k]}")
        for k in range(4): A(f"v_and_b32 v{A1+k}, {vU}, {M[k]}")
        A(f"v_add_f32 {vL}, {vL}, {vP1}")
        A(f"s_waitcnt vmcnt({VM})")
        for u, a in enumerate((A0, A1)):
            for m in range(3):
                A(f"v_mfma_f32_16x16x32_bf16 {R4(ACC+4*m)}, {R4(a)}, {R4(r+24+12*u+4*m)}, {R4(ACC+4*m)}")
        issue_v(s)
    A("s_branch L_loop")

    for s in range(D):
        Lb(f"L_sig{s}")
        A(f"s_cmp_lg_u32 {sWV}, 3")
        A(f"s_cbranch_scc1 L_stat{s}")
        A("s_waitcnt vmcnt(0)")
        A("s_atomic_add s71, s[16:17], 0")
        A(f"s_branch L_stat{s}")
        Lb(f"L_dyn{s}")
        A(f"s_cmp_eq_u32 {sLEFT}, 1")
        A(f"s_cbranch_scc0 L_dynb{s}")
        C("last static chunk: make sure every workgroup has set up its hand-off words, then start claiming")
        A(f"s_load_dword {sT0}, s[16:17], 0 glc")
        A(f"s_mov_b32 {sSPIN}, 0")
        Lb(f"L_rdy{s}")
        A("s_waitcnt lgkmcnt(0)")
        A(f"s_cmp_ge_u32 {sT0}, 256")
        A(f"s_cbranch_scc1 L_rdyok{s}")
        A(f"s_add_u32 {sSPIN}, {sSPIN}, 1")
        A(f"s_cmp_gt_u32 {sSPIN}, 0x40000")
        A(f"s_cbranch_scc1 L_rdyok{s}")
        A(f"s_mov_b32 {sT0}, 0")
        A(f"s_atomic_add {sT0}, s[16:17], 0 glc")
        A(f"s_branch L_rdy{s}")
        Lb(f"L_rdyok{s}")
        A(f"s_mov_b32 {sCLM}, 1")
        A(f"s_atomic_add {sCLM}, s[48:49], 0 glc")
        A(f"s_branch L_stat{s}")
        Lb(f"L_dynb{s}")
        A(f"s_mov_b32 {sLEFT}, 0")
        A(f"s_cmp_eq_u32 {sPH}, 2")
        A(f"s_cbranch_scc1 L_tag{s}")
        Lb(f"L_chk{s}")
        A("s_waitcnt lgkmcnt(0)")
        A(f"s_cmp_lt_u32 {sCLM}, {ndyn}")
        A(f"s_cbranch_scc0 L_fail{s}")
        A(f"s_add_u32 {sOFF}, {sCLM}, {sROT}")
        A(f"s_add_u32 {sOFF}, {sOFF}, {nstat}")
        A(f"s_and_b32 {sOFF}, {sOFF}, 255")
        A(f"s_mul_i32 {sOFF}, {sOFF}, {CB}")
        A(f"s_mov_b32 {sCLM}, 1")
        A(f"s_atomic_add {sCLM}, s[48:49], 0 glc")
        A(f"s_branch L_tag{s}")
        Lb(f"L_fail{s}")
        A(f"s_add_u32 {sPH}, {sPH}, {1 if steal else 2}")
        A(f"s_cmp_eq_u32 {sPH}, 2")
        A(f"s_cbranch_scc1 L_fin{s}")
        C("own keys are all taken: turn to the partner's")
        A("s_mov_b32 s48, s50"); A("s_mov_b32 s49, s51")
        A(f"s_mov_b32 {sCLM}, 1")
        A(f"s_atomic_add {sCLM}, s[48:49], 0 glc")
        A("s_mov_b32 s20, s52"); A("s_mov_b32 s21, s53"); A("s_mov_b32 s24, s54"); A("s_mov_b32 s25, s55")
        A(f"s_mov_b32 {sROT}, {sROTP}")
        A(f"s_lshl_b32 {sT0}, {sPAR}, 9"); A(f"s_add_u32 {sT0}, {sT0}, {W_Q}")
        A(f"v_and_b32 {vW}, 7, v0"); A(f"v_lshlrev_b32 {vW}, 4, {vW}")
        for m in range(3):
            A(f"buffer_load_dwordx4 {R4(Q2+4*m)}, {vW}, {WS}, {sT0} offen offset:{128*m} {hs}")
        A(f"s_branch L_chk{s}")
        Lb(f"L_fin{s}")
        A(f"s_mov_b32 {sOFF}, 0"); A("s_mov_b32 s22, 0"); A("s_mov_b32 s26, 0")
        Lb(f"L_tag{s}")
        A(f"s_mov_b32 {TAG(s)}, {sPH}")
        A(f"s_branch L_adv{s}")

        Lb(f"L_resc{s}")
        C("the running maximum rises: rescale the sums")
        A("s_nop 0")
        A(f"v_max_f32_dpp {vT}, {vT}, {vT} row_ror:8 row_mask:0xf bank_mask:0xf")
        A("s_nop 0")
        A(f"v_mov_b32 {vU}, {vT}")
        A("s_nop 1")
        A(f"v_permlane16_swap_b32 {vU}, {vT}")
        A(f"v_max_f32 {vT}, {vT}, {vU}")
        A(f"v_mov_b32 {vU}, {vT}")
        A("s_nop 1")
        A(f"v_permlane32_swap_b32 {vU}, {vT}")
        A(f"v_max3_f32 {vM}, {vT}, {vU}, {vM}")
        A(f"v_mul_f32 {vT}, {sC}, {vM}")
        A(f"v_sub_f32 {vU}, {vMC}, {vT}")
        A(f"v_exp_f32 {vU}, {vU}")
        A(f"v_mov_b32 {vMC}, {vT}")
        A(f"v_mul_f32 {vL}, {vL}, {vU}")
        for k in range(12): A(f"v_mul_f32 v{ACC+k}, v{ACC+k}, {vU}")
        A(f"s_branch L_back{s}")

        Lb(f"L_sw{s}")
        A(f"s_mov_b32 {sRET}, {s}")
        A(f"s_mov_b32 {sT2}, {TAG(s)}")
        if s != D - 1: A("s_branch L_switch")
    Lb("L_switch")
    C("write this wave's running state for the current item to LDS")
    A(f"v_add_f32_dpp {vT}, {vL}, {vL} row_ror:8 row_mask:0xf bank_mask:0xf")
    A(f"s_mul_i32 {sT0}, {sCUR}, {4*SLOT}")
    A(f"v_mov_b32 {vU}, {vT}")
    A(f"s_mul_i32 {sT1}, {sWV}, {SLOT}")
    A(f"s_add_u32 {sT0}, {sT0}, {sT1}")
    A(f"v_permlane16_swap_b32 {vU}, {vT}")
    A(f"v_add_f32 {vT}, {vT}, {vU}")
    A(f"v_mov_b32 {vU}, {vT}")
    A(f"v_mov_b32 {vW}, {sT0}")
    A(f"v_mov_b32 v52, {vMC}")
    A(f"v_permlane32_swap_b32 {vU}, {vT}")
    A(f"v_add_f32 v53, {vT}, {vU}")
    dump_acc(vDA, vDB, 0)
    A(f"ds_write_b64 {vW}, v[52:53] offset:1536")
    A(f"s_cmp_eq_u32 {sT2}, 2")
    A("s_cbranch_scc1 L_tail")
    A(f"s_mov_b32 {sCUR}, 1")
    A(f"v_add_u32 {vDA}, {4*SLOT}, {vDA}")
    A(f"v_add_u32 {vDB}, {4*SLOT}, {vDB}")
    A(f"s_waitcnt vmcnt({VM}) lgkmcnt(0)")
    for k in range(12): A(f"v_mov_b32 v{Q+k}, v{Q2+k}")
    for k in range(12): A(f"v_mov_b32 v{ACC+k}, 0")
    A(f"v_mov_b32 {vL}, 0")
    A(f"v_mov_b32 {vM}, {f32(-3.0e38)}")
    A(f"v_mul_f32 {vMC}, {sC}, {vM}")
    for s in range(D - 1):
        A(f"s_cmp_eq_u32 {sRET}, {s}")
        A(f"s_cbranch_scc1 L_go{s}")
    A(f"s_branch L_go{D-1}")

    Lb("L_tail")
    st(2)
    BF = 64
    AF = 112
    C("wo fragments (transposing reads) while the other waves finish")
    A("v_and_b32 v48, 3, v0"); A("v_lshlrev_b32 v48, 3, v48")
    A("v_lshrrev_b32 v49, 2, v0"); A("v_and_b32 v50, 3, v49"); A("v_lshl_add_u32 v48, v50, 5, v48")
    A("v_lshrrev_b32 v50, 4, v0"); A("v_lshl_add_u32 v48, v50, 8, v48")
    A(f"s_mul_i32 {sT0}, {sWV}, 6144"); A(f"s_add_u32 {sT0}, {sT0}, {L_WO}")
    A(f"v_add_u32 v49, {sT0}, v48")
    A("s_waitcnt vmcnt(0) lgkmcnt(0)")
    A("s_barrier")
    st(3)
    A(f"s_cmp_gt_u32 {sWV}, 1")
    A("s_cbranch_scc1 L_nocomb")
    C("waves 0 and 1 merge the four wave states of the own item and of the partner's item")
    A(f"s_mul_i32 {sT0}, {sWV}, {4*SLOT}")
    A(f"v_mov_b32 v52, {sT0}")
    A(f"v_lshl_add_u32 v53, v0, 4, {sT0}")
    for v in range(4): A(f"ds_read_b64 {R2(136+2*v)}, v52 offset:{SLOT*v + 1536}")
    A("s_mov_b32 exec_hi, 0xffff")
    for v in range(4):
        A(f"ds_read_b128 {R4(144+8*v)}, v53 offset:{SLOT*v}")
        A(f"ds_read_b128 {R4(148+8*v)}, v53 offset:{SLOT*v + 768}")
    A("s_mov_b32 exec_hi, -1")
    A(f"s_and_b32 {sT2}, {sPAR}, 31")
    A(f"s_cmp_eq_u32 {sWV}, 0")
    A(f"s_cselect_b32 {sT2}, {sH}, {sT2}")
    p_slot(sT1, sT2, 0)
    A(f"s_lshl_b32 {sT2}, {sWV}, 9"); A(f"s_add_u32 {sT1}, {sT1}, {sT2}")
    A("s_waitcnt lgkmcnt(8)")
    A("v_max3_f32 v54, v136, v138, v140")
    A("v_max_f32 v54, v54, v142")
    for v in range(4): A(f"v_sub_f32 v{136+2*v}, v{136+2*v}, v54")
    for v in range(4): A(f"v_exp_f32 v{136+2*v}, v{136+2*v}")
    A("s_nop 0")
    A("v_mul_f32 v55, v136, v137")
    for v in range(1, 4): A(f"v_fmac_f32 v55, v{136+2*v}, v{137+2*v}")
    A(f"v_max_f32 v56, {f32(1e-30)}, v55")
    A("v_rcp_f32 v56, v56")
    A("v_lshlrev_b32 v57, 3, v0")
    for v in range(4): A(f"v_mul_f32 v{136+2*v}, v{136+2*v}, v56")
    for v in range(4):
        A(f"s_waitcnt lgkmcnt({6-2*v})")
        for k in range(4): A(f"v_add_f32 v{144+8*v+k}, v{144+8*v+k}, v{148+8*v+k}")
        for k in range(4):
            if v == 0: A(f"v_mul_f32 v{12+k}, v{144+k}, v136")
            else: A(f"v_fmac_f32 v{12+k}, v{144+8*v+k}, v{136+2*v}")
    A("v_cvt_pk_bf16_f32 v12, v12, v13")
    A("v_cvt_pk_bf16_f32 v13, v14, v15")
    A("s_mov_b32 exec_lo, 0"); A("s_mov_b32 exec_hi, 0x10000")
    A("v_mov_b32 v12, v54"); A("v_mov_b32 v13, v55")
    A("s_mov_b32 exec_hi, 0x20000")
    A("v_mov_b32 v12, 0"); A("v_mov_b32 v13, 0")
    A("s_mov_b32 exec_lo, -1"); A("s_mov_b32 exec_hi, 0x3ffff")
    A("v_min_u32 v12, 0xfffffffe, v12"); A("v_min_u32 v13, 0xfffffffe, v13")
    A(f"buffer_store_dwordx2 v[12:13], v57, {WS}, {sT1} offen {hs}")
    A("s_mov_b64 exec, -1")
    Lb("L_nocomb")
    for m in range(6):
        for hh in range(2):
            A(f"ds_read_b64_tr_b16 {R2(BF + 4*m + 2*hh)}, v49 offset:{1024*m + 128*hh}")
    A(f"s_cmp_lg_u32 {sWV}, 3")
    A("s_cbranch_scc1 L_notr2")
    for m in range(6):
        for hh in range(2):
            A(f"ds_read_b64_tr_b16 {R2(BF + 24 + 4*m + 2*hh)}, v49 offset:{6144 + 1024*m + 128*hh}")
    Lb("L_notr2")
    C("gather the 16 partial rows of this head (8 batches x owner/helper)")
    A(f"s_lshl_b32 {sT0}, {sH}, 13"); A(f"s_lshl_b32 {sT1}, {sWV}, 11"); A(f"s_add_u32 {sT0}, {sT0}, {sT1}"); A(f"s_add_u32 {sT0}, {sT0}, {W_P}")
    A("v_lshlrev_b32 v52, 4, v0")
    A("v_lshrrev_b32 v53, 5, v0"); A(f"v_mul_u32_u24 v53, {AROW}, v53"); A("v_and_b32 v54, 31, v0"); A("v_lshl_add_u32 v53, v54, 4, v53")
    A(f"s_mul_i32 {sT1}, {sWV}, {4*AROW}"); A(f"s_add_u32 {sT1}, {sT1}, {L_AR}")
    A(f"v_add_u32 v53, {sT1}, v53")
    A(f"s_mov_b32 {sSPIN}, 0")
    def poll(lbl, soff, r0, r1, vaddr, mask_lo, mask_hi):
        A(f"s_mov_b32 s72, {mask_lo}"); A(f"s_mov_b32 s73, {mask_hi}")
        A(f"s_mov_b32 s74, {mask_lo}"); A(f"s_mov_b32 s75, {mask_hi}")
        Lb(lbl)
        A("s_mov_b64 exec, s[72:73]")
        A(f"s_cbranch_execz {lbl}_a")
        A(f"buffer_load_dwordx4 {R4(r0)}, {vaddr}, {WS}, {soff} offen {hs}")
        Lb(f"{lbl}_a")
        A("s_mov_b64 exec, s[74:75]")
        A(f"s_cbranch_execz {lbl}_b")
        A(f"buffer_load_dwordx4 {R4(r1)}, {vaddr}, {WS}, {soff} offen offset:1024 {hs}")
        Lb(f"{lbl}_b")
        A(f"s_mov_b32 exec_lo, {mask_lo}"); A(f"s_mov_b32 exec_hi, {mask_hi}")
        A(f"s_add_u32 {sSPIN}, {sSPIN}, 1")
        A("s_waitcnt vmcnt(0)")
        A(f"v_max3_u32 v54, v{r0}, v{r0+1}, v{r0+2}")
        A(f"v_max3_u32 v55, v{r1}, v{r1+1}, v{r1+2}")
        A(f"v_max_u32 v54, v54, v{r0+3}")
        A(f"v_max_u32 v55, v55, v{r1+3}")
        A("v_cmp_eq_u32 s[72:73], -1, v54")
        A("v_cmp_eq_u32 s[74:75], -1, v55")
        A(f"s_cmp_gt_u32 {sSPIN}, 0x40000")
        A(f"s_cbranch_scc1 {lbl}_done")
        A("s_or_b64 s[76:77], s[72:73], s[74:75]")
        A(f"s_cbranch_scc1 {lbl}")
        Lb(f"{lbl}_done")
    poll("L_pollp", sT0, 136, 140, "v52", "0x01ffffff", "0x01ffffff")
    A(f"ds_write_b128 v53, {R4(136)}")
    A(f"ds_write_b128 v53, {R4(140)} offset:{2*AROW}")
    A("s_mov_b64 exec, -1")
    A("v_and_b32 v54, 15, v0"); A(f"v_mul_u32_u24 v55, {AROW}, v54"); A("v_lshl_add_u32 v55, v50, 4, v55")
    A(f"v_mul_u32_u24 v56, {4*AROW}, v50")
    A("v_mul_u32_u24 v57, 163840, v50"); A("v_lshl_add_u32 v57, v54, 2, v57")
    A(f"s_mul_i32 {sT0}, {sB}, 5"); A(f"s_add_u32 {sT0}, {sT0}, {sWV}"); A(f"s_lshl_b32 {sT0}, {sT0}, 11")
    A(f"s_lshl_b32 {sT1}, {sH}, 6"); A(f"s_add_u32 {sT0}, {sT0}, {sT1}"); A(f"s_add_u32 {sT0}, {sT0}, {W_R}")
    A(f"s_add_u32 {sT1}, {sT0}, 81920")
    A("s_waitcnt lgkmcnt(0)")
    A("s_barrier")
    st(4)
    for c in range(4): A(f"ds_read_b64 {R2(136+2*c)}, v56 offset:{L_AR + AROW*c + 384}")
    for m in range(6): A(f"ds_read_b128 {R4(AF+4*m)}, v55 offset:{L_AR + 64*m}")
    A("s_waitcnt lgkmcnt(6)")
    A("v_max_f32 v52, v136, v138"); A("v_max_f32 v53, v140, v142")
    A("v_sub_f32 v136, v136, v52"); A("v_sub_f32 v138, v138, v52"); A("v_sub_f32 v140, v140, v53"); A("v_sub_f32 v142, v142, v53")
    for c in range(4): A(f"v_exp_f32 v{136+2*c}, v{136+2*c}")
    for m in range(6):
        A(f"s_waitcnt lgkmcnt({5-m})")
        A(f"v_mfma_f32_16x16x32_bf16 v[12:15], {R4(AF+4*m)}, {R4(BF+4*m)}, {'0' if m == 0 else 'v[12:15]'}")
    for c in range(4): A(f"v_mul_f32 v{136+2*c}, v{136+2*c}, v{137+2*c}")
    A("v_add_f32 v52, v136, v138"); A("v_add_f32 v53, v140, v142")
    A("v_rcp_f32 v52, v52"); A("v_rcp_f32 v53, v53")
    A(f"s_cmp_lg_u32 {sWV}, 3")
    A("s_cbranch_scc1 L_nomm2")
    for m in range(6):
        A(f"v_mfma_f32_16x16x32_bf16 v[16:19], {R4(AF+4*m)}, {R4(BF+24+4*m)}, {'0' if m == 0 else 'v[16:19]'}")
    Lb("L_nomm2")
    A("v_mul_f32 v136, v136, v52"); A("v_mul_f32 v138, v138, v52"); A("v_mul_f32 v140, v140, v53"); A("v_mul_f32 v142, v142, v53")
    def emit_y(d, off):
        A(f"v_mul_f32 v{d}, v{d}, v136"); A(f"v_mul_f32 v{d+2}, v{d+2}, v140")
        A(f"v_fmac_f32 v{d}, v{d+1}, v138"); A(f"v_fmac_f32 v{d+2}, v{d+3}, v142")
        A(f"v_min_u32 v{d}, 0xfffffffe, v{d}"); A(f"v_min_u32 v{d+2}, 0xfffffffe, v{d+2}")
        A(f"buffer_store_dword v{d}, v57, {WS}, {sT0} offen offset:{off} {hs}")
        A(f"buffer_store_dword v{d+2}, v57, {WS}, {sT1} offen offset:{off} {hs}")
    emit_y(12, 0)
    A(f"s_cmp_lg_u32 {sWV}, 3")
    A("s_cbranch_scc1 L_noy2")
    emit_y(16, 2048)
    Lb("L_noy2")
    st(5)
    C("final sum over the 32 heads: wave 2 takes tile w, wave 1 tile 256 + w")
    A(f"s_mov_b32 {sT2}, s2")
    A(f"s_cmp_eq_u32 {sWV}, 2")
    A("s_cbranch_scc1 L_red")
    A(f"s_cmp_lg_u32 {sWV}, 1")
    A("s_cbranch_scc1 L_fini")
    A(f"s_add_u32 {sT2}, s2, 256")
    A(f"s_cmp_ge_u32 {sT2}, 320")
    A("s_cbranch_scc1 L_fini")
    Lb("L_red")
    A(f"s_lshl_b32 {sT0}, {sT2}, 11"); A(f"s_add_u32 {sT0}, {sT0}, {W_R}")
    A("v_lshlrev_b32 v52, 4, v0")
    A("s_mov_b32 s36, s14"); A("s_mov_b32 s37, s15")
    A(f"s_lshl_b32 {sT1}, {sT2}, 5")
    A("v_and_b32 v53, 3, v0"); A("v_lshlrev_b32 v53, 3, v53"); A("v_lshl_add_u32 v53, v50, 1, v53")
    A(f"s_mov_b32 {sSPIN}, 0")
    poll("L_pollr", sT0, 136, 140, "v52", "-1", "-1")
    for k in range(4): A(f"v_add_f32 v{136+k}, v{136+k}, v{140+k}")
    A("s_nop 0")
    A("v_permlane32_swap_b32 v136, v138")
    A("v_permlane32_swap_b32 v137, v139")
    A("v_add_f32 v136, v136, v138"); A("v_add_f32 v137, v137, v139")
    A("s_nop 1")
    A("v_permlane16_swap_b32 v136, v137")
    A("v_add_f32 v136, v136, v137")
    A("s_nop 1")
    A("v_add_f32_dpp v136, v136, v136 row_ror:4 row_mask:0xf bank_mask:0xf")
    A("s_nop 1")
    A("v_add_f32_dpp v136, v136, v136 row_ror:8 row_mask:0xf bank_mask:0xf")
    A("v_cvt_pk_bf16_f32 v136, v136, v136")
    A("s_mov_b32 exec_lo, 0x000f000f"); A("s_mov_b32 exec_hi, 0x000f000f")
    A(f"buffer_store_short v136, v53, {XS}, {sT1} offen")
    A("s_mov_b64 exec, -1")
    Lb("L_fini")
    if stamp:
        st(6)
        A("s_getreg_b32 s94, hwreg(HW_REG_XCC_ID)")
        A("s_waitcnt lgkmcnt(0)")
        A("s_lshl_b32 s72, s2, 2"); A(f"s_add_u32 s72, s72, {sWV}"); A("s_lshl_b32 s72, s72, 5"); A(f"s_add_u32 s72, s72, {W_STAMP}")
        for i in range(7): A(f"v_mov_b32 v{12+i}, s{80+2*i}")
        A("s_and_b32 s94, s94, 15"); A(f"s_lshl_b32 s95, {sCUR}, 4"); A("s_or_b32 s94, s94, s95")
        A("v_mov_b32 v19, s94"); A("v_mov_b32 v20, 0")
        A("s_mov_b64 exec, 1")
        A(f"buffer_store_dwordx4 v[12:15], v20, {WS}, s72 offen")
        A(f"buffer_store_dwordx4 v[16:19], v20, {WS}, s72 offen offset:16")
    Lb("L_end")
    A("s_endpgm")
    out.append('.section .rodata,"a"')
    out.append(".p2align 6")
    out.append(f".amdhsa_kernel {NAME}")
    for d in ("next_free_vgpr 496", "next_free_sgpr 102", "accum_offset 256", "group_segment_fixed_size 0", "kernarg_size 64",
              "user_sgpr_count 2", "user_sgpr_kernarg_segment_ptr 1", "system_sgpr_workgroup_id_x 1",
              "float_denorm_mode_32 3"):
        out.append("  .amdhsa_" + d)
    out.append(".end_amdhsa_kernel")
    return "\n".join(out) + "\n"

if __name__ == "__main__":
    kw = json.loads(sys.argv[2]) if len(sys.argv) > 2 else {}
    open(sys.argv[1], "w").write(gen(**kw))
```

```python
import struct, math, sys, json

NAME = "standalone__mha_block_cached__sampling_kernel"
ITEM = 4096 * 384
CB = 6144
W_G, W_Q, W_P, W_R, W_END = 0x0, 0x10000, 0x30000, 0x70000, 0x110000
W_STAMP = 0x200000
SLOT = 1552
L_SLOT, L_QP, L_Q16, L_AR, L_RDY, L_WO = 0, 12416, 18560, 20096, 26496, 26624
L_END = L_WO + 30720
AROW = 400
SPIN = 0x40000

def f32(x):
    return "0x%08x" % struct.unpack("<I", struct.pack("<f", x))[0]

def gen(D=2, poll0=40, rreq=1, gbias=0, pmask="35", wrot=1, steal=1, stamp=0, rot=1, kvf="nt", wqf="", wof="",
        order="mix", hs="sc0 sc1", S=8, warm=0, nap=64, x_noinit=0, x_nowo=0, x_nowq=0, x_notail=0, x_pro=0, x_noring=0, prio=3, chk="w0", wo_by="st", wo_at=6, chkw=2):
    out = []
    A = lambda s: out.append("    " + s)
    Lb = lambda s: out.append(s + ":")
    C = lambda s: out.append("    ; " + s)
    VM = 12 * D - 6
    sWV, sB, sH, sPAR = "s3", "s40", "s41", "s42"
    sOFF, sNEXT, sPH, sPT = "s43", "s44", "s45", "s46"
    sIDX, sROT, sROTP, sCUR, sC, sRET, sT0, sT1, sT2, sSPIN = "s47", "s60", "s61", "s62", "s63", "s64", "s65", "s66", "s67", "s68"
    sSELLO, sSELHI, sONE, sEVT = "s69", "s70", "s71", "s78"
    sEND, sST, sGN, sCODE, sPP = "s96", "s97", "s98", "s99", "s100"
    TAG = lambda s: f"s{56+s}"
    KS, VS, WS, TS, XS = "s[20:23]", "s[24:27]", "s[28:31]", "s[32:35]", "s[36:39]"
    vKO, vVO = "v1", "v2"
    M = ["v3", "v4", "v5", "v6"]
    vMC, vM, vL = "v7", "v8", "v9"
    vDA, vDB = "v10", "v11"
    ACC = 12
    Q, Q2 = 24, 36
    vS0, vS1, vT, vU = "v48", "v49", "v50", "v51"
    A0, A1 = 52, 56
    vP0, vP1, vW, vX = "v60", "v61", "v62", "v63"
    RING = 64
    STG = RING + 48 * D
    assert STG + 12 * S <= 256
    R4 = lambda r: f"v[{r}:{r+3}]"
    R2 = lambda r: f"v[{r}:{r+1}]"
    def st(i, late=False):
        if stamp and not (late and x_pro):
            A(f"s_memrealtime s[{80+2*i}:{81+2*i}]")
    def p_slot(dst, hreg, t):
        A(f"s_lshl_b32 {dst}, {hreg}, 3"); A(f"s_add_u32 {dst}, {dst}, {sB}"); A(f"s_lshl_b32 {dst}, {dst}, 10"); A(f"s_add_u32 {dst}, {dst}, {W_P + 512*t}")
    def partner():
        if pmask == "mix":
            A(f"s_lshr_b32 {sPAR}, s2, 2"); A(f"s_and_b32 {sPAR}, {sPAR}, 6"); A(f"s_or_b32 {sPAR}, {sPAR}, 1"); A(f"s_xor_b32 {sPAR}, {sPAR}, s2")
        elif pmask == "35":
            A("s_bitcmp1_b32 s2, 3"); A(f"s_cselect_b32 {sPAR}, 5, 3"); A(f"s_xor_b32 {sPAR}, {sPAR}, s2")
        else:
            A(f"s_xor_b32 {sPAR}, s2, {int(pmask)}")
    def q_sum(vaddr):
        tmp = [24, 28, 32, 36, 40, 44, 12, 16]
        for i in range(8):
            A(f"ds_read_b128 {R4(tmp[i])}, {vaddr} offset:{L_QP + 768*i}")
        for i in range(1, 8):
            A(f"s_waitcnt lgkmcnt({7-i})")
            for k in range(4): A(f"v_add_f32 v{24+k}, v{24+k}, v{tmp[i]+k}")
        A("v_cvt_pk_bf16_f32 v24, v24, v25")
        A("v_cvt_pk_bf16_f32 v25, v26, v27")

    out.append(f"; @launch grid=(256,1,1) block=(320,1,1) lds={L_END}")
    out.append('.amdgcn_target "amdgcn-amd-amdhsa--gfx950"')
    out.append(".text")
    out.append(f".globl {NAME}")
    out.append(".p2align 8")
    out.append(f".type {NAME},@function")
    Lb(NAME)
    A("s_cmp_ge_u32 s2, 256")
    A("s_cbranch_scc1 L_end")
    A("s_load_dwordx16 s[4:19], s[0:1], 0")
    st(0)
    A("v_lshrrev_b32 v1, 6, v0")
    A("v_and_b32 v0, 63, v0")
    A(f"v_readfirstlane_b32 {sWV}, v1")
    A(f"s_lshr_b32 {sB}, s2, 5")
    A(f"s_and_b32 {sH}, s2, 31")
    A("s_mov_b32 s35, 0x20000")
    A("s_mov_b32 s39, 0x20000")
    A("s_mov_b32 s31, 0x20000")
    A(f"s_mov_b32 s30, {W_END if not stamp else W_STAMP + 0x20000}")
    A("s_mov_b32 s38, 10240")
    A(f"s_cmp_eq_u32 {sWV}, 4")
    A("s_cbranch_scc1 L_service")
    C("lane offsets: K rows are read 8 lanes per key, V and wq rows 16 lanes per 256 bytes")
    A("v_lshrrev_b32 v48, 3, v0")
    A("v_and_b32 v49, 7, v0")
    A("v_lshrrev_b32 v50, 4, v0")
    A("v_and_b32 v51, 15, v0")
    A("v_mul_u32_u24 v60, 49152, v50")
    A("v_lshl_add_u32 v60, v51, 4, v60")
    A("v_add_u32 v62, 24704, v60")
    A("v_add_u32 v61, 256, v60")
    A("v_add_u32 v52, 24448, v60")
    A("v_cmp_gt_u32 vcc, 8, v51")
    A("v_lshlrev_b32 v63, 2, v48")
    A(f"s_mul_i32 {sT0}, {sB}, 1280")
    A("v_cndmask_b32 v61, v52, v61, vcc")
    A(f"v_mul_u32_u24 {vKO}, 384, v48")
    A(f"v_lshl_add_u32 {vKO}, v49, 4, {vKO}")
    A(f"v_mul_u32_u24 {vVO}, 768, v50")
    A(f"v_lshl_add_u32 {vVO}, v51, 4, {vVO}")
    A(f"s_lshl_b32 {sT1}, {sWV}, 5")
    A(f"s_add_u32 s79, {sT0}, {sT1}")
    A(f"s_mul_i32 {sPP}, {sB}, {10*wrot}")
    A(f"s_lshr_b32 {sPP}, {sPP}, 3")
    A(f"s_mul_i32 {sT1}, {sWV}, {16*12288}")
    A(f"s_mul_i32 {sT2}, {sH}, 384")
    A(f"s_add_u32 {sT1}, {sT1}, {sT2}")
    A(f"s_mul_i32 s72, s2, {ITEM}")
    A(f"s_mul_hi_u32 s73, s2, {ITEM}")
    A(f"s_mul_i32 {sROT}, s2, {4*rot}")
    A(f"s_add_u32 {sIDX}, {sROT}, {sWV}")
    A(f"s_and_b32 {sOFF}, {sIDX}, 255")
    A(f"s_mul_i32 {sOFF}, {sOFF}, {CB}")
    A("s_mov_b32 s23, 0x20000")
    A("s_mov_b32 s27, 0x20000")
    A(f"s_mov_b32 s22, {0 if x_noring else ITEM}")
    A(f"s_mov_b32 s26, {0 if x_noring else ITEM}")
    A(f"s_sub_u32 s34, {640*12288}, {sT1}" if not x_nowq else "s_mov_b32 s34, 0")
    A("s_waitcnt lgkmcnt(0)")
    A("s_mov_b32 s36, s4"); A("s_mov_b32 s37, s5")
    A(f"s_add_u32 s32, s10, {sT1}"); A("s_addc_u32 s33, s11, 0")
    A("s_add_u32 s20, s6, s72"); A("s_addc_u32 s21, s7, s73")
    A("s_add_u32 s24, s8, s72"); A("s_addc_u32 s25, s9, s73")
    XR = 36

    def issue_k(s):
        r = RING + 48 * s
        for u in range(2):
            for m in range(3):
                A(f"buffer_load_dwordx4 {R4(r + 12*u + 4*m)}, {vKO}, {KS}, {sOFF} offen offset:{3072*u + 128*m} {kvf}")
    def issue_v(s):
        r = RING + 48 * s + 24
        for u in range(2):
            for m in range(3):
                A(f"buffer_load_dwordx4 {R4(r + 12*u + 4*m)}, {vVO}, {VS}, {sOFF} offen offset:{3072*u + 256*m} {kvf}")
    def step_static():
        A(f"s_add_u32 {sIDX}, {sIDX}, 4")
        A(f"s_and_b32 {sOFF}, {sIDX}, 255")
        A(f"s_mul_i32 {sOFF}, {sOFF}, {CB}")
    def issue_wq(u):
        if u % 2 == 0:
            A(f"s_lshl_b32 s73, {sPP}, 7"); A("s_add_u32 s73, s73, s79")
            A(f"s_mul_i32 s72, {sPP}, 786432")
            A(f"buffer_load_dword v{XR + u//2}, v63, {XS}, s73 offen")
            A(f"s_add_u32 {sPP}, {sPP}, 1"); A(f"s_cmp_eq_u32 {sPP}, 10"); A(f"s_cselect_b32 {sPP}, 0, {sPP}")
        else:
            A("s_add_u32 s72, s72, 12288")
        for m, vo in enumerate(("v60", "v61", "v62")):
            A(f"buffer_load_dwordx4 {R4(STG + 12*(u % S) + 4*m)}, {vo}, {TS}, s72 offen {wqf}")
    def dump_acc(va, vb, off):
        A("s_mov_b32 exec_hi, 0")
        A(f"ds_write_b128 {va}, {R4(ACC)} offset:{off}")
        A("s_mov_b32 exec_lo, 0"); A("s_mov_b32 exec_hi, -1")
        A(f"ds_write_b128 {va}, {R4(ACC+8)} offset:{off+256}")
        A("s_mov_b32 exec_lo, 0x00ff00ff"); A("s_mov_b32 exec_hi, 0xff00ff00")
        A(f"ds_write_b128 {vb}, {R4(ACC+4)} offset:{off}")
        A("s_mov_b64 exec, -1")

    def arm_check():
        A(f"s_mov_b32 {sEVT}, {poll0}"); A(f"s_mov_b32 {sST}, 4")
        if chk == "w0":
            A("s_and_b32 s74, s2, 15"); A(f"s_add_u32 s74, s74, {poll0 - 18}")
            A(f"s_cmp_eq_u32 {sWV}, {chkw}"); A(f"s_cselect_b32 {sEVT}, s74, {sEVT}"); A(f"s_cselect_b32 {sST}, 5, {sST}")
    def setup():
        C("set-up that overlaps the loads in flight")
        A("s_mov_b32 s28, s18"); A("s_mov_b32 s29, s19")
        partner()
        A(f"s_mul_i32 {sROTP}, {sPAR}, {4*rot}")
        A(f"s_mul_i32 s74, {sPAR}, {ITEM}"); A(f"s_mul_hi_u32 s75, {sPAR}, {ITEM}")
        A("s_add_u32 s52, s6, s74"); A("s_addc_u32 s53, s7, s75")
        A("s_add_u32 s54, s8, s74"); A("s_addc_u32 s55, s9, s75")
        A(f"s_lshl_b32 s75, {sWV}, 2")
        A("s_lshl_b32 s74, s2, 8"); A("s_add_u32 s74, s74, s75"); A("s_add_u32 s48, s18, s74"); A("s_addc_u32 s49, s19, 0")
        A(f"s_lshl_b32 s74, {sPAR}, 8"); A("s_add_u32 s74, s74, s75"); A("s_add_u32 s50, s18, s74"); A("s_addc_u32 s51, s19, 0")
        A(f"s_mov_b32 {sNEXT}, {D}"); A(f"s_mov_b32 {sEND}, 64"); A(f"s_mov_b32 {sST}, 4"); A(f"s_mov_b32 {sGN}, 0")
        A(f"s_mov_b32 {sPH}, 0"); A(f"s_mov_b32 {sCUR}, 0"); A(f"s_mov_b32 {sPT}, 0"); A(f"s_mov_b32 {sEVT}, {poll0}")
        if wo_by == "st":
            A(f"s_mov_b32 {sEVT}, {wo_at}"); A(f"s_mov_b32 {sST}, 6")
        else:
            arm_check()
        for s in range(D): A(f"s_mov_b32 {TAG(s)}, 0")
        A(f"s_mov_b32 {sC}, {f32(192 ** -0.5 * math.log2(math.e))}")
        A(f"s_mov_b32 {sSELLO}, 0x01000100"); A(f"s_mov_b32 {sSELHI}, 0x03020302")
        C("diagonal-operand masks: register r keeps element (lane&7) when (lane&7)>>1 == r")
        A("v_and_b32 v52, 1, v0")
        A("v_lshlrev_b32 v52, 4, v52")
        A("v_mov_b32 v53, 0xffff")
        A("v_lshlrev_b32 v52, v52, v53")
        A("v_lshrrev_b32 v53, 1, v49")
        for r in range(4):
            A(f"v_cmp_eq_u32 vcc, {r}, v53")
            A("s_nop 1")
            A(f"v_cndmask_b32 {M[r]}, 0, v52, vcc")
        C("LDS addresses of the accumulator dump")
        A("v_and_b32 v52, 1, v50")
        A("v_lshlrev_b32 v52, 4, v52")
        A("v_lshl_add_u32 v52, v51, 5, v52")
        A("v_cmp_gt_u32 vcc, 32, v0")
        A("v_add_u32 v53, 768, v52")
        A(f"v_add_u32 {vDB}, 512, v52")
        A(f"v_cndmask_b32 {vDA}, v53, v52, vcc")
        A(f"s_mul_i32 {sT0}, {sWV}, {SLOT}")
        A(f"s_mul_i32 {sT1}, {sWV}, 1536")
        A(f"s_add_u32 {sT1}, {sT1}, {L_QP}")
        A(f"v_add_u32 v46, {sT1}, {vDA}")
        A(f"v_add_u32 v47, {sT1}, {vDB}")
        A(f"v_add_u32 {vDA}, {sT0}, {vDA}")
        A(f"v_add_u32 {vDB}, {sT0}, {vDB}")
        for r in range(12): A(f"v_mov_b32 v{ACC+r}, 0")
        A(f"v_mov_b32 {vL}, 0")
        A(f"v_mov_b32 {vM}, {f32(-3.0e38)}")
        A(f"v_mul_f32 {vMC}, {sC}, {vM}")
        C("the helper slot starts out empty")
        dump_acc(vDA, vDB, 4 * SLOT)
        A(f"v_mov_b32 v56, {vMC}"); A("v_mov_b32 v57, 0"); A(f"v_mov_b32 v58, {sT0}")
        A(f"ds_write_b64 v58, v[56:57] offset:{4*SLOT + 1536}")

    ring_items = []
    for s in range(D):
        ring_items += [("k", s), ("v", s)]
    if order == "mix":
        at = [(i + 1) * 20 // len(ring_items) for i in range(len(ring_items))]
    elif order == "wfirst":
        at = [20] * len(ring_items)
    else:
        at = [int(x) for x in order.split(",")]
    seq = []
    for u in range(21):
        for it, a in zip(ring_items, at):
            if a == u: seq.append(it)
        if u < 20: seq.append(("w", u))
    C("q = x[b] @ wq[:, head]: 160 rows per wave, 8 rows per step")
    pos = {}
    n = [0]
    done = [0]
    def consume(u):
        if u == 0: setup()
        a = A0 if u % 2 == 0 else A1
        if u % 2 == 0:
            A(f"s_waitcnt vmcnt({min(63, n[0] - pos[u] + 3)})")
        A(f"v_perm_b32 {vT}, v{XR + u//2}, v{XR + u//2}, {sSELLO if u % 2 == 0 else sSELHI}")
        for r in range(4): A(f"v_and_b32 v{a+r}, {vT}, {M[r]}")
        A(f"s_waitcnt vmcnt({min(63, n[0] - pos[u])})")
        A("s_nop 0")
        if x_pro and u in (0, 9, 19): st({0: 4, 9: 5, 19: 6}[u])
        for m in range(3):
            A(f"v_mfma_f32_16x16x32_bf16 {R4(ACC+4*m)}, {R4(a)}, {R4(STG + 12*(u % S) + 4*m)}, {R4(ACC+4*m)}")
    for kind, i in seq:
        if kind == "w":
            if i >= S:
                consume(i - S); done[0] = i - S + 1
            issue_wq(i); n[0] += 4 if i % 2 == 0 else 3
            pos[i] = n[0]
        elif kind == "k":
            if i: step_static()
            issue_k(i); n[0] += 6
        else:
            issue_v(i); n[0] += 6
    if x_pro: st(3)
    for u in range(done[0], 20): consume(u)
    A("v_lshlrev_b32 v56, 4, v0")
    A(f"s_mul_i32 {sT0}, {sWV}, 384")
    A(f"s_add_u32 {sT0}, {sT0}, {L_Q16}")
    A(f"v_lshl_add_u32 v57, v0, 3, {sT0}")
    A(f"v_lshl_add_u32 v58, v49, 4, {sT0}")
    A("s_nop 4")
    dump_acc("v46", "v47", 0)
    A("s_waitcnt lgkmcnt(0)")
    A("s_barrier")
    A("s_mov_b32 exec_hi, 0xffff")
    q_sum("v56")
    A("ds_write_b64 v57, v[24:25]")
    A("s_mov_b32 exec_hi, -1")
    for r in range(12): A(f"v_mov_b32 v{ACC+r}, 0")
    A("s_waitcnt lgkmcnt(0)")
    for m in range(3):
        A(f"ds_read_b128 {R4(Q+4*m)}, v58 offset:{128*m}")
    A("s_waitcnt lgkmcnt(0)")
    st(1)

    out.append(".p2align 6")
    Lb("L_loop")
    for s in range(D):
        r = RING + 48 * s
        A(f"s_cmp_lg_u32 {TAG(s)}, {sCUR}")
        A(f"s_cbranch_scc1 L_sw{s}")
        Lb(f"L_go{s}")
        A(f"v_mov_b32 {vS0}, 0"); A(f"v_mov_b32 {vS1}, 0")
        A(f"s_waitcnt vmcnt({VM})")
        for k in range(12):
            A(f"v_dot2c_f32_bf16 {vS0}, v{r+k}, v{Q+k}")
            A(f"v_dot2c_f32_bf16 {vS1}, v{r+12+k}, v{Q+k}")
        A(f"s_cmp_ge_u32 {sNEXT}, {sEVT}")
        A(f"s_cbranch_scc1 L_sig{s}")
        Lb(f"L_stat{s}")
        if x_notail:
            A(f"s_cmp_eq_u32 {sNEXT}, 8"); A(f"s_cbranch_scc0 L_m1{s}"); st(3); Lb(f"L_m1{s}")
            A(f"s_cmp_eq_u32 {sNEXT}, 38"); A(f"s_cbranch_scc0 L_m2{s}"); st(4); Lb(f"L_m2{s}")
        A(f"s_add_u32 {sNEXT}, {sNEXT}, 1")
        step_static()
        Lb(f"L_adv{s}")
        issue_k(s)
        for ctl in ("quad_perm:[1,0,3,2]", "quad_perm:[2,3,0,1]", "row_half_mirror"):
            A(f"v_add_f32_dpp {vS0}, {vS0}, {vS0} {ctl} row_mask:0xf bank_mask:0xf")
            A(f"v_add_f32_dpp {vS1}, {vS1}, {vS1} {ctl} row_mask:0xf bank_mask:0xf")
            if ctl != "row_half_mirror": A("s_nop 0")
        A(f"v_max_f32 {vT}, {vS0}, {vS1}")
        A(f"v_cmp_gt_f32 vcc, {vT}, {vM}")
        A(f"s_cbranch_vccnz L_resc{s}")
        Lb(f"L_back{s}")
        A(f"v_fma_f32 {vP0}, {vS0}, {sC}, -{vMC}")
        A(f"v_fma_f32 {vP1}, {vS1}, {sC}, -{vMC}")
        A(f"v_exp_f32 {vP0}, {vP0}")
        A(f"v_exp_f32 {vP1}, {vP1}")
        A("s_nop 0")
        A(f"v_cvt_pk_bf16_f32 {vT}, {vP0}, {vP0}")
        A(f"v_cvt_pk_bf16_f32 {vU}, {vP1}, {vP1}")
        A(f"v_add_f32 {vL}, {vL}, {vP0}")
        for k in range(4): A(f"v_and_b32 v{A0+k}, {vT}, {M[k]}")
        for k in range(4): A(f"v_and_b32 v{A1+k}, {vU}, {M[k]}")
        A(f"v_add_f32 {vL}, {vL}, {vP1}")
        A(f"s_waitcnt vmcnt({VM})")
        for u, a in enumerate((A0, A1)):
            for m in range(3):
                A(f"v_mfma_f32_16x16x32_bf16 {R4(ACC+4*m)}, {R4(a)}, {R4(r+24+12*u+4*m)}, {R4(ACC+4*m)}")
        issue_v(s)
        A(f"s_cmp_lt_u32 {sST}, 2")
        A(f"s_cbranch_scc0 L_np{s}")
        A(f"s_load_dword {sPT}, s[50:51], 0 glc")
        Lb(f"L_np{s}")
    A("s_branch L_loop")

    for s in range(D):
        Lb(f"L_sig{s}")
        A(f"s_mov_b32 {sRET}, {s}")
        A("s_branch L_share")
        Lb(f"L_tag{s}")
        A(f"s_mov_b32 {TAG(s)}, {sPH}")
        A(f"s_cmp_eq_u32 {sPH}, 2")
        A(f"s_cbranch_scc0 L_stat{s}")
        A(f"s_branch L_adv{s}")

        Lb(f"L_resc{s}")
        C("the running maximum rises: rescale the sums")
        A("s_nop 0")
        A(f"v_max_f32_dpp {vT}, {vT}, {vT} row_ror:8 row_mask:0xf bank_mask:0xf")
        A("s_nop 0")
        A(f"v_mov_b32 {vU}, {vT}")
        A("s_nop 1")
        A(f"v_permlane16_swap_b32 {vU}, {vT}")
        A(f"v_max_f32 {vT}, {vT}, {vU}")
        A(f"v_mov_b32 {vU}, {vT}")
        A("s_nop 1")
        A(f"v_permlane32_swap_b32 {vU}, {vT}")
        A(f"v_max3_f32 {vM}, {vT}, {vU}, {vM}")
        A(f"v_mul_f32 {vT}, {sC}, {vM}")
        A(f"v_sub_f32 {vU}, {vMC}, {vT}")
        A(f"v_exp_f32 {vU}, {vU}")
        A(f"v_mov_b32 {vMC}, {vT}")
        A(f"v_mul_f32 {vL}, {vL}, {vU}")
        for k in range(12): A(f"v_mul_f32 v{ACC+k}, v{ACC+k}, {vU}")
        A(f"s_branch L_back{s}")

    C("work sharing with the same wave of the partner workgroup")
    C("states: 0 running, 1 asked, 2 granted, 3 closed, 4 not started")
    Lb("L_share")
    A(f"s_cmp_eq_u32 {sPH}, 2")
    A("s_cbranch_scc1 L_share_ret")
    A(f"s_cmp_lt_u32 {sST}, 4")
    A("s_cbranch_scc1 L_started")
    if wo_by == "st":
        A(f"s_cmp_eq_u32 {sST}, 6")
        A("s_cbranch_scc0 L_nowo")
        C("wo tiles of this workgroup's 80 output columns go to LDS: 30 row blocks shared by the four waves")
        A(f"s_mul_i32 {sT0}, {sH}, {192*1280}"); A(f"s_mul_i32 {sT1}, {sB}, 160"); A(f"s_add_u32 {sT0}, {sT0}, {sT1}")
        A(f"s_add_u32 s32, s12, {sT0}"); A("s_addc_u32 s33, s13, 0")
        A(f"s_sub_u32 s34, {6144*1280}, {sT0}" if not x_nowo else "s_mov_b32 s34, 0")
        A(f"v_lshrrev_b32 {vW}, 1, v0"); A(f"v_mul_u32_u24 {vW}, 1280, {vW}"); A(f"v_and_b32 {vX}, 1, v0"); A(f"v_lshl_add_u32 {vW}, {vX}, 4, {vW}")
        C("wave v takes rows 32v..32v+31 of the five tiles and a share of rows 128..191")
        A(f"s_mul_i32 {sT0}, {sWV}, 40960"); A(f"s_lshl_b32 {sT1}, {sWV}, 10"); A(f"s_add_u32 {sT1}, {sT1}, {L_WO}")
        for T in range(5):
            A(f"s_add_u32 m0, {sT1}, {6144*T}")
            A(f"s_add_u32 {sT2}, {sT0}, {32*T}")
            A(f"buffer_load_dwordx4 {vW}, {TS}, {sT2} offen {wof} lds")
        A(f"s_lshr_b32 {sT0}, {sWV}, 1"); A(f"s_add_u32 {sT0}, {sT0}, 4")
        A(f"s_lshl_b32 {sT1}, {sT0}, 10"); A(f"s_add_u32 {sT1}, {sT1}, {L_WO}"); A(f"s_mul_i32 {sT0}, {sT0}, 40960")
        A(f"s_bitcmp1_b32 {sWV}, 0")
        A("s_cbranch_scc1 L_wo_odd")
        for T in range(3):
            A(f"s_add_u32 m0, {sT1}, {6144*T}")
            A(f"s_add_u32 {sT2}, {sT0}, {32*T}")
            A(f"buffer_load_dwordx4 {vW}, {TS}, {sT2} offen {wof} lds")
        A("s_branch L_wo_done")
        Lb("L_wo_odd")
        for T in range(3, 5):
            A(f"s_add_u32 m0, {sT1}, {6144*T}")
            A(f"s_add_u32 {sT2}, {sT0}, {32*T}")
            A(f"buffer_load_dwordx4 {vW}, {TS}, {sT2} offen {wof} lds")
        Lb("L_wo_done")
        arm_check()
        A("s_branch L_share_ret")
        Lb("L_nowo")
    if chk == "w0":
        A(f"s_cmp_eq_u32 {sST}, 5")
        A("s_cbranch_scc0 L_chklds")
        A(f"s_mov_b32 {sSPIN}, 0")
        Lb("L_all")
        A(f"s_load_dword {sT0}, s[16:17], 0 glc")
        A(f"s_add_u32 {sSPIN}, {sSPIN}, 1")
        A(f"s_cmp_gt_u32 {sSPIN}, {SPIN}")
        A("s_waitcnt lgkmcnt(0)")
        A("s_cbranch_scc1 L_allok")
        A(f"s_cmp_ge_u32 {sT0}, 256")
        A("s_cbranch_scc0 L_all")
        Lb("L_allok")
        A(f"v_mov_b32 {vW}, {L_RDY}"); A(f"v_mov_b32 {vX}, 1")
        A(f"ds_write_b32 {vW}, {vX}")
        A(f"s_mov_b32 {sST}, 4"); A(f"s_mov_b32 {sEVT}, {poll0}")
        A("s_branch L_share_ret")
        Lb("L_chklds")
    C("every workgroup must have set up its hand-off words before any of them is used")
    A(f"v_mov_b32 {vW}, {L_RDY}")
    A(f"s_mov_b32 {sSPIN}, 0")
    Lb("L_rdy")
    A(f"ds_read_b32 {vX}, {vW}")
    A(f"s_add_u32 {sSPIN}, {sSPIN}, 1")
    A("s_waitcnt lgkmcnt(0)")
    A(f"v_readfirstlane_b32 {sT0}, {vX}")
    A(f"s_cmp_gt_u32 {sSPIN}, {SPIN*16}")
    A("s_cbranch_scc1 L_rdyok")
    A(f"s_cmp_eq_u32 {sT0}, 0")
    A("s_cbranch_scc1 L_rdy")
    Lb("L_rdyok")
    A(f"s_mov_b32 {sST}, {0 if steal else 3}")
    Lb("L_started")
    A(f"s_cmp_gt_u32 {sST}, 1")
    A("s_cbranch_scc1 L_take")
    A("s_waitcnt lgkmcnt(0)")
    A(f"s_cmp_eq_u32 {sST}, 1")
    A("s_cbranch_scc1 L_asked")
    A(f"s_sub_u32 {sT0}, {sEND}, {sNEXT}")
    A(f"s_cmp_eq_u32 {sPT}, 0")
    A("s_cbranch_scc1 L_quiet")
    if gbias:
        A(f"s_add_i32 {sT0}, {sT0}, {gbias}"); A(f"s_max_i32 {sT0}, {sT0}, 0")
    A(f"s_lshr_b32 {sT0}, {sT0}, 1")
    A(f"s_sub_u32 {sEND}, {sEND}, {sT0}")
    A(f"s_or_b32 {sCODE}, {sEND}, 0x200")
    A(f"s_cmp_eq_u32 {sT0}, 0")
    A(f"s_cselect_b32 {sCODE}, 0x100, {sCODE}")
    A(f"s_atomic_add {sCODE}, s[48:49], 0")
    A(f"s_mov_b32 {sST}, 3")
    A("s_branch L_take")
    Lb("L_quiet")
    A(f"s_cmp_le_u32 {sT0}, {rreq}")
    A("s_cbranch_scc0 L_take")
    A(f"s_mov_b32 {sCODE}, 0x100")
    A(f"s_atomic_add {sCODE}, s[48:49], 0")
    A(f"s_mov_b32 {sST}, 1")
    A("s_branch L_take")
    Lb("L_asked")
    A(f"s_cmp_eq_u32 {sPT}, 0")
    A("s_cbranch_scc1 L_take")
    Lb("L_answer")
    A(f"s_mov_b32 {sST}, 3")
    A(f"s_bitcmp1_b32 {sPT}, 9")
    A("s_cbranch_scc0 L_take")
    A(f"s_mov_b32 {sST}, 2")
    A(f"s_and_b32 {sGN}, {sPT}, 63")
    A(f"s_lshl_b32 {sT0}, {sPAR}, 9"); A(f"s_add_u32 {sT0}, {sT0}, {W_Q}")
    A(f"v_and_b32 {vW}, 7, v0"); A(f"v_lshlrev_b32 {vW}, 4, {vW}")
    for m in range(3):
        A(f"buffer_load_dwordx4 {R4(Q2+4*m)}, {vW}, {WS}, {sT0} offen offset:{128*m} {hs}")
    Lb("L_take")
    A(f"s_cmp_lt_u32 {sNEXT}, {sEND}")
    A("s_cbranch_scc1 L_share_ret")
    A(f"s_cmp_eq_u32 {sST}, 1")
    A("s_cbranch_scc0 L_noask")
    A(f"s_mov_b32 {sSPIN}, 0")
    Lb("L_spin")
    A(f"s_load_dword {sPT}, s[50:51], 0 glc")
    A(f"s_add_u32 {sSPIN}, {sSPIN}, 1")
    A(f"s_cmp_gt_u32 {sSPIN}, {SPIN}")
    A("s_waitcnt lgkmcnt(0)")
    A("s_cbranch_scc1 L_answer")
    A(f"s_cmp_eq_u32 {sPT}, 0")
    A("s_cbranch_scc1 L_spin")
    A("s_branch L_answer")
    Lb("L_noask")
    A(f"s_cmp_eq_u32 {sST}, 2")
    A("s_cbranch_scc0 L_done")
    A("s_mov_b32 s20, s52"); A("s_mov_b32 s21, s53"); A("s_mov_b32 s24, s54"); A("s_mov_b32 s25, s55")
    A(f"s_mov_b32 {sNEXT}, {sGN}"); A(f"s_mov_b32 {sEND}, 64"); A(f"s_mov_b32 {sPH}, 1"); A(f"s_mov_b32 {sST}, 3")
    A(f"s_lshl_b32 {sIDX}, {sGN}, 2"); A(f"s_add_u32 {sIDX}, {sIDX}, {sROTP}"); A(f"s_add_u32 {sIDX}, {sIDX}, {sWV}"); A(f"s_sub_u32 {sIDX}, {sIDX}, 4")
    A(f"s_mov_b32 {sEVT}, 0")
    A("s_branch L_share_ret")
    Lb("L_done")
    A(f"s_mov_b32 {sPH}, 2")
    A(f"s_mov_b32 {sOFF}, 0"); A("s_mov_b32 s22, 0"); A("s_mov_b32 s26, 0")
    Lb("L_share_ret")
    for s in range(D - 1):
        A(f"s_cmp_eq_u32 {sRET}, {s}")
        A(f"s_cbranch_scc1 L_tag{s}")
    A(f"s_branch L_tag{D-1}")

    Lb("L_service")
    if prio: A(f"s_setprio {prio}")
    A(f"v_mov_b32 v56, {L_RDY}"); A("v_mov_b32 v57, 0")
    A("ds_write_b32 v56, v57")
    partner()
    for r in range(4): A(f"v_mov_b32 v{Q2+r}, -1")
    A("v_lshrrev_b32 v56, 2, v0"); A("v_and_b32 v56, 7, v56"); A("v_mul_u32_u24 v56, 81920, v56")
    A("v_lshrrev_b32 v57, 5, v0"); A("v_lshl_add_u32 v56, v57, 11, v56")
    A("v_and_b32 v57, 3, v0"); A("v_lshl_add_u32 v56, v57, 4, v56")
    A(f"s_mul_i32 {sT0}, {sB}, 10240"); A(f"s_lshl_b32 {sT1}, {sH}, 6"); A(f"s_add_u32 {sT0}, {sT0}, {sT1}"); A(f"s_add_u32 s72, {sT0}, {W_R}")
    A("s_add_u32 s73, s72, 4096"); A("s_add_u32 s74, s72, 8192")
    p_slot(sT0, sH, 0)
    A(f"s_and_b32 {sT2}, {sPAR}, 31")
    p_slot(sT1, sT2, 1)
    A(f"v_mov_b32 v58, {sT0}"); A(f"v_mov_b32 v57, {sT1}")
    A("v_cmp_gt_u32 vcc, 32, v0")
    A("v_and_b32 v59, 31, v0")
    A("s_lshl_b32 s75, s2, 8")
    A("v_cndmask_b32 v58, v57, v58, vcc")
    A("v_lshl_add_u32 v58, v59, 4, v58")
    for r in range(4): A(f"v_mov_b32 v{60+r}, 0")
    A(f"s_mov_b32 {sONE}, 1"); A(f"s_mov_b32 {sCUR}, 0"); A(f"s_mov_b32 {sGN}, 0")
    A("s_waitcnt lgkmcnt(0)")
    A("s_mov_b32 s28, s18"); A("s_mov_b32 s29, s19")
    A("s_mov_b32 s36, s14"); A("s_mov_b32 s37, s15")
    C("mark this workgroup's outgoing hand-off words as empty")
    if not x_noinit:
        A(f"buffer_store_dwordx4 {R4(Q2)}, v56, {WS}, s72 offen {hs}")
        A(f"buffer_store_dwordx4 {R4(Q2)}, v56, {WS}, s73 offen {hs}")
        A("s_mov_b32 exec_hi, 0")
        A(f"buffer_store_dwordx4 {R4(Q2)}, v56, {WS}, s74 offen {hs}")
        A("s_mov_b32 exec_lo, 0x01ffffff"); A("s_mov_b32 exec_hi, 0x01ffffff")
        A(f"buffer_store_dwordx4 {R4(Q2)}, v58, {WS}, 0 offen {hs}")
    A("s_mov_b64 exec, 1")
    A(f"buffer_store_dwordx4 v[60:63], v60, {WS}, s75 offen {hs}")
    A("s_mov_b64 exec, -1")
    A(f"s_mul_i32 {sT0}, {sH}, {192*1280}"); A(f"s_mul_i32 {sT1}, {sB}, 160"); A(f"s_add_u32 {sT0}, {sT0}, {sT1}")
    A(f"s_add_u32 s32, s12, {sT0}"); A("s_addc_u32 s33, s13, 0")
    A(f"s_sub_u32 s34, {6144*1280}, {sT0}" if not x_nowo else "s_mov_b32 s34, 0")
    A("v_lshrrev_b32 v52, 1, v0"); A("v_mul_u32_u24 v52, 1280, v52"); A("v_and_b32 v53, 1, v0"); A("v_lshl_add_u32 v52, v53, 4, v52")
    A("v_lshlrev_b32 v53, 4, v0"); A("v_lshlrev_b32 v54, 3, v0")
    A("s_lshl_b32 s72, s2, 9"); A(f"s_add_u32 s72, s72, {W_Q}")
    A("s_barrier")
    C("publish q for the partner")
    A("s_mov_b32 exec_hi, 0xffff")
    q_sum("v53")
    A(f"buffer_store_dwordx2 v[24:25], v54, {WS}, s72 offen {hs}")
    A("s_mov_b32 exec_hi, -1")
    C("wo tiles of this workgroup's 80 output columns go to LDS")
    for m in range(6 if wo_by == "svc" else 0):
        for T in range(5):
            A(f"s_mov_b32 m0, {L_WO + 6144*T + 1024*m}")
            A(f"s_mov_b32 {sT2}, {40960*m + 32*T}")
            A(f"buffer_load_dwordx4 v52, {TS}, {sT2} offen {wof} lds")
    A("s_waitcnt vmcnt(0)")
    A(f"s_atomic_add {sONE}, s[16:17], 0")
    if chk == "svc":
        A(f"s_mov_b32 {sSPIN}, 0")
        Lb("L_all")
        A(f"s_sleep {nap}")
        A(f"s_load_dword {sT0}, s[16:17], 0 glc")
        A(f"s_add_u32 {sSPIN}, {sSPIN}, 1")
        A(f"s_cmp_gt_u32 {sSPIN}, {SPIN}")
        A("s_waitcnt lgkmcnt(0)")
        A("s_cbranch_scc1 L_allok")
        A(f"s_cmp_ge_u32 {sT0}, 256")
        A("s_cbranch_scc0 L_all")
        Lb("L_allok")
        A(f"v_mov_b32 v56, {L_RDY}"); A("v_mov_b32 v57, 1")
        A("ds_write_b32 v56, v57")
    st(1)
    A("s_branch L_tail")

    for s in range(D):
        Lb(f"L_sw{s}")
        A(f"s_mov_b32 {sRET}, {s}")
        A(f"s_mov_b32 {sT2}, {TAG(s)}")
        if s != D - 1: A("s_branch L_switch")
    Lb("L_switch")
    C("write this wave's running state for the current item to LDS")
    A(f"v_add_f32_dpp {vT}, {vL}, {vL} row_ror:8 row_mask:0xf bank_mask:0xf")
    A(f"s_mul_i32 {sT0}, {sCUR}, {4*SLOT}")
    A(f"v_mov_b32 {vU}, {vT}")
    A(f"s_mul_i32 {sT1}, {sWV}, {SLOT}")
    A(f"s_add_u32 {sT0}, {sT0}, {sT1}")
    A(f"v_permlane16_swap_b32 {vU}, {vT}")
    A(f"v_add_f32 {vT}, {vT}, {vU}")
    A(f"v_mov_b32 {vU}, {vT}")
    A(f"v_mov_b32 {vW}, {sT0}")
    A(f"v_mov_b32 v52, {vMC}")
    A(f"v_permlane32_swap_b32 {vU}, {vT}")
    A(f"v_add_f32 v53, {vT}, {vU}")
    dump_acc(vDA, vDB, 0)
    A(f"ds_write_b64 {vW}, v[52:53] offset:1536")
    A(f"s_cmp_eq_u32 {sT2}, 2")
    A("s_cbranch_scc1 L_tail")
    A(f"s_mov_b32 {sCUR}, 1")
    A(f"v_add_u32 {vDA}, {4*SLOT}, {vDA}")
    A(f"v_add_u32 {vDB}, {4*SLOT}, {vDB}")
    A(f"s_waitcnt vmcnt({VM}) lgkmcnt(0)")
    for k in range(12): A(f"v_mov_b32 v{Q+k}, v{Q2+k}")
    for k in range(12): A(f"v_mov_b32 v{ACC+k}, 0")
    A(f"v_mov_b32 {vL}, 0")
    A(f"v_mov_b32 {vM}, {f32(-3.0e38)}")
    A(f"v_mul_f32 {vMC}, {sC}, {vM}")
    for s in range(D - 1):
        A(f"s_cmp_eq_u32 {sRET}, {s}")
        A(f"s_cbranch_scc1 L_go{s}")
    A(f"s_branch L_go{D-1}")

    Lb("L_tail")
    st(2)
    if x_notail:
        st(5, True)
        A("s_waitcnt vmcnt(0) lgkmcnt(0)")
        A("s_branch L_fini")
    BF = 64
    AF = 112
    A("v_and_b32 v48, 3, v0"); A("v_lshlrev_b32 v48, 3, v48")
    A("v_lshrrev_b32 v49, 2, v0"); A("v_and_b32 v50, 3, v49"); A("v_lshl_add_u32 v48, v50, 5, v48")
    A("v_lshrrev_b32 v50, 4, v0"); A("v_lshl_add_u32 v48, v50, 8, v48")
    A(f"s_mul_i32 {sT0}, {sWV}, 6144"); A(f"s_add_u32 {sT0}, {sT0}, {L_WO}")
    A(f"v_add_u32 v49, {sT0}, v48")
    A("s_waitcnt vmcnt(0) lgkmcnt(0)")
    A("s_barrier")
    st(3, True)
    A(f"s_cmp_gt_u32 {sWV}, 1")
    A("s_cbranch_scc1 L_nocomb")
    C("waves 0 and 1 merge the four wave states of the own item and of the partner's item")
    A(f"s_mul_i32 {sT0}, {sWV}, {4*SLOT}")
    A(f"v_mov_b32 v52, {sT0}")
    A(f"v_lshl_add_u32 v53, v0, 4, {sT0}")
    for v in range(4): A(f"ds_read_b64 {R2(136+2*v)}, v52 offset:{SLOT*v + 1536}")
    A("s_mov_b32 exec_hi, 0xffff")
    for v in range(4):
        A(f"ds_read_b128 {R4(144+8*v)}, v53 offset:{SLOT*v}")
        A(f"ds_read_b128 {R4(148+8*v)}, v53 offset:{SLOT*v + 768}")
    A("s_mov_b32 exec_hi, -1")
    A(f"s_and_b32 {sT2}, {sPAR}, 31")
    A(f"s_cmp_eq_u32 {sWV}, 0")
    A(f"s_cselect_b32 {sT2}, {sH}, {sT2}")
    p_slot(sT1, sT2, 0)
    A(f"s_lshl_b32 {sT2}, {sWV}, 9"); A(f"s_add_u32 {sT1}, {sT1}, {sT2}")
    A("s_waitcnt lgkmcnt(8)")
    A("v_max3_f32 v54, v136, v138, v140")
    A("v_max_f32 v54, v54, v142")
    for v in range(4): A(f"v_sub_f32 v{136+2*v}, v{136+2*v}, v54")
    for v in range(4): A(f"v_exp_f32 v{136+2*v}, v{136+2*v}")
    A("s_nop 0")
    A("v_mul_f32 v55, v136, v137")
    for v in range(1, 4): A(f"v_fmac_f32 v55, v{136+2*v}, v{137+2*v}")
    A(f"v_max_f32 v56, {f32(1e-30)}, v55")
    A("v_rcp_f32 v56, v56")
    A("v_lshlrev_b32 v57, 3, v0")
    for v in range(4): A(f"v_mul_f32 v{136+2*v}, v{136+2*v}, v56")
    for v in range(4):
        A(f"s_waitcnt lgkmcnt({6-2*v})")
        for k in range(4): A(f"v_add_f32 v{144+8*v+k}, v{144+8*v+k}, v{148+8*v+k}")
        for k in range(4):
            if v == 0: A(f"v_mul_f32 v{12+k}, v{144+k}, v136")
            else: A(f"v_fmac_f32 v{12+k}, v{144+8*v+k}, v{136+2*v}")
    A("v_cvt_pk_bf16_f32 v12, v12, v13")
    A("v_cvt_pk_bf16_f32 v13, v14, v15")
    A("s_mov_b32 exec_lo, 0"); A("s_mov_b32 exec_hi, 0x10000")
    A("v_mov_b32 v12, v54"); A("v_mov_b32 v13, v55")
    A("s_mov_b32 exec_hi, 0x20000")
    A("v_mov_b32 v12, 0"); A("v_mov_b32 v13, 0")
    A("s_mov_b32 exec_lo, -1"); A("s_mov_b32 exec_hi, 0x3ffff")
    A("v_min_u32 v12, 0xfffffffe, v12"); A("v_min_u32 v13, 0xfffffffe, v13")
    A(f"buffer_store_dwordx2 v[12:13], v57, {WS}, {sT1} offen {hs}")
    A("s_mov_b64 exec, -1")
    Lb("L_nocomb")
    C("wo fragments (transposing reads)")
    for m in range(6):
        for hh in range(2):
            A(f"ds_read_b64_tr_b16 {R2(BF + 4*m + 2*hh)}, v49 offset:{1024*m + 128*hh}")
    def poll(lbl, soff, r0, r1, vaddr, mask_lo, mask_hi):
        A(f"s_mov_b32 {sSPIN}, 0")
        A(f"s_mov_b32 s72, {mask_lo}"); A(f"s_mov_b32 s73, {mask_hi}")
        A(f"s_mov_b32 s74, {mask_lo}"); A(f"s_mov_b32 s75, {mask_hi}")
        Lb(lbl)
        A("s_mov_b64 exec, s[72:73]")
        A(f"s_cbranch_execz {lbl}_a")
        A(f"buffer_load_dwordx4 {R4(r0)}, {vaddr}, {WS}, {soff} offen {hs}")
        Lb(f"{lbl}_a")
        A("s_mov_b64 exec, s[74:75]")
        A(f"s_cbranch_execz {lbl}_b")
        A(f"buffer_load_dwordx4 {R4(r1)}, {vaddr}, {WS}, {soff} offen offset:1024 {hs}")
        Lb(f"{lbl}_b")
        A(f"s_mov_b32 exec_lo, {mask_lo}"); A(f"s_mov_b32 exec_hi, {mask_hi}")
        A(f"s_add_u32 {sSPIN}, {sSPIN}, 1")
        A("s_waitcnt vmcnt(0)")
        A(f"v_max3_u32 v54, v{r0}, v{r0+1}, v{r0+2}")
        A(f"v_max3_u32 v55, v{r1}, v{r1+1}, v{r1+2}")
        A(f"v_max_u32 v54, v54, v{r0+3}")
        A(f"v_max_u32 v55, v55, v{r1+3}")
        A("v_cmp_eq_u32 s[72:73], -1, v54")
        A("v_cmp_eq_u32 s[74:75], -1, v55")
        A(f"s_cmp_gt_u32 {sSPIN}, {SPIN}")
        A(f"s_cbranch_scc1 {lbl}_done")
        A("s_or_b64 s[76:77], s[72:73], s[74:75]")
        A(f"s_cbranch_scc1 {lbl}")
        Lb(f"{lbl}_done")
    A(f"s_cmp_eq_u32 {sWV}, 4")
    A("s_cbranch_scc1 L_nogather")
    C("gather the 16 partial rows of this head (8 batches x owner/helper)")
    A(f"s_lshl_b32 {sT0}, {sH}, 13"); A(f"s_lshl_b32 {sT1}, {sWV}, 11"); A(f"s_add_u32 {sT0}, {sT0}, {sT1}"); A(f"s_add_u32 {sT0}, {sT0}, {W_P}")
    A("v_lshlrev_b32 v52, 4, v0")
    A("v_lshrrev_b32 v53, 5, v0"); A(f"v_mul_u32_u24 v53, {AROW}, v53"); A("v_and_b32 v54, 31, v0"); A("v_lshl_add_u32 v53, v54, 4, v53")
    A(f"s_mul_i32 {sT1}, {sWV}, {4*AROW}"); A(f"s_add_u32 {sT1}, {sT1}, {L_AR}")
    A(f"v_add_u32 v53, {sT1}, v53")
    poll("L_pollp", sT0, 136, 140, "v52", "0x01ffffff", "0x01ffffff")
    A(f"ds_write_b128 v53, {R4(136)}")
    A(f"ds_write_b128 v53, {R4(140)} offset:{2*AROW}")
    A("s_mov_b64 exec, -1")
    Lb("L_nogather")
    A("v_and_b32 v54, 15, v0"); A(f"v_mul_u32_u24 v55, {AROW}, v54"); A("v_lshl_add_u32 v55, v50, 4, v55")
    A(f"v_mul_u32_u24 v56, {4*AROW}, v50")
    A("v_mul_u32_u24 v57, 163840, v50"); A("v_lshl_add_u32 v57, v54, 2, v57")
    A(f"s_mul_i32 {sT0}, {sB}, 5"); A(f"s_add_u32 {sT0}, {sT0}, {sWV}"); A(f"s_lshl_b32 {sT0}, {sT0}, 11")
    A(f"s_lshl_b32 {sT1}, {sH}, 6"); A(f"s_add_u32 {sT0}, {sT0}, {sT1}"); A(f"s_add_u32 {sT0}, {sT0}, {W_R}")
    A(f"s_add_u32 {sT1}, {sT0}, 81920")
    A("s_waitcnt lgkmcnt(0)")
    A("s_barrier")
    st(4, True)
    for c in range(4): A(f"ds_read_b64 {R2(136+2*c)}, v56 offset:{L_AR + AROW*c + 384}")
    for m in range(6): A(f"ds_read_b128 {R4(AF+4*m)}, v55 offset:{L_AR + 64*m}")
    A("s_waitcnt lgkmcnt(6)")
    A("v_max_f32 v52, v136, v138"); A("v_max_f32 v53, v140, v142")
    A("v_sub_f32 v136, v136, v52"); A("v_sub_f32 v138, v138, v52"); A("v_sub_f32 v140, v140, v53"); A("v_sub_f32 v142, v142, v53")
    for c in range(4): A(f"v_exp_f32 v{136+2*c}, v{136+2*c}")
    for m in range(6):
        A(f"s_waitcnt lgkmcnt({5-m})")
        A(f"v_mfma_f32_16x16x32_bf16 v[12:15], {R4(AF+4*m)}, {R4(BF+4*m)}, {'0' if m == 0 else 'v[12:15]'}")
    for c in range(4): A(f"v_mul_f32 v{136+2*c}, v{136+2*c}, v{137+2*c}")
    A("v_add_f32 v52, v136, v138"); A("v_add_f32 v53, v140, v142")
    A("v_rcp_f32 v52, v52"); A("v_rcp_f32 v53, v53")
    A("s_nop 0")
    A("v_mul_f32 v136, v136, v52"); A("v_mul_f32 v138, v138, v52"); A("v_mul_f32 v140, v140, v53"); A("v_mul_f32 v142, v142, v53")
    A("v_mul_f32 v12, v12, v136"); A("v_mul_f32 v14, v14, v140")
    A("v_fmac_f32 v12, v13, v138"); A("v_fmac_f32 v14, v15, v142")
    A("v_min_u32 v12, 0xfffffffe, v12"); A("v_min_u32 v14, 0xfffffffe, v14")
    A(f"buffer_store_dword v12, v57, {WS}, {sT0} offen {hs}")
    A(f"buffer_store_dword v14, v57, {WS}, {sT1} offen {hs}")
    st(5, True)
    C("final sum over the 32 heads: wave 4 takes tile w, wave 3 tile 256 + w")
    A(f"s_mov_b32 {sT2}, s2")
    A(f"s_cmp_eq_u32 {sWV}, 4")
    A("s_cbranch_scc1 L_red")
    A(f"s_cmp_lg_u32 {sWV}, 3")
    A("s_cbranch_scc1 L_fini")
    A(f"s_add_u32 {sT2}, s2, 256")
    A(f"s_cmp_ge_u32 {sT2}, 320")
    A("s_cbranch_scc1 L_fini")
    Lb("L_red")
    A(f"s_lshl_b32 {sT0}, {sT2}, 11"); A(f"s_add_u32 {sT0}, {sT0}, {W_R}")
    A("v_lshlrev_b32 v52, 4, v0")
    A("s_mov_b32 s36, s14"); A("s_mov_b32 s37, s15")
    A(f"s_lshl_b32 {sT1}, {sT2}, 5")
    A("v_and_b32 v53, 3, v0"); A("v_lshlrev_b32 v53, 3, v53"); A("v_lshl_add_u32 v53, v50, 1, v53")
    poll("L_pollr", sT0, 136, 140, "v52", "-1", "-1")
    for k in range(4): A(f"v_add_f32 v{136+k}, v{136+k}, v{140+k}")
    A("s_nop 0")
    A("v_permlane32_swap_b32 v136, v138")
    A("v_permlane32_swap_b32 v137, v139")
    A("v_add_f32 v136, v136, v138"); A("v_add_f32 v137, v137, v139")
    A("s_nop 1")
    A("v_permlane16_swap_b32 v136, v137")
    A("v_add_f32 v136, v136, v137")
    A("s_nop 1")
    A("v_add_f32_dpp v136, v136, v136 row_ror:4 row_mask:0xf bank_mask:0xf")
    A("s_nop 1")
    A("v_add_f32_dpp v136, v136, v136 row_ror:8 row_mask:0xf bank_mask:0xf")
    A("v_cvt_pk_bf16_f32 v136, v136, v136")
    A("s_mov_b32 exec_lo, 0x000f000f"); A("s_mov_b32 exec_hi, 0x000f000f")
    A(f"buffer_store_short v136, v53, {XS}, {sT1} offen")
    A("s_mov_b64 exec, -1")
    Lb("L_fini")
    if stamp:
        st(6, True)
        A("s_getreg_b32 s94, hwreg(HW_REG_XCC_ID)")
        A("s_waitcnt lgkmcnt(0)")
        A("s_mul_i32 s72, s2, 5"); A(f"s_add_u32 s72, s72, {sWV}"); A("s_lshl_b32 s72, s72, 5"); A(f"s_add_u32 s72, s72, {W_STAMP}")
        for i in range(7): A(f"v_mov_b32 v{12+i}, s{80+2*i}")
        A("s_and_b32 s94, s94, 15"); A(f"s_lshl_b32 s95, {sCUR}, 4"); A("s_or_b32 s94, s94, s95"); A(f"s_lshl_b32 s95, {sGN}, 8"); A("s_or_b32 s94, s94, s95")
        A("v_mov_b32 v19, s94"); A("v_mov_b32 v20, 0")
        A("s_mov_b64 exec, 1")
        A(f"buffer_store_dwordx4 v[12:15], v20, {WS}, s72 offen")
        A(f"buffer_store_dwordx4 v[16:19], v20, {WS}, s72 offen offset:16")
    Lb("L_end")
    A("s_endpgm")
    out.append('.section .rodata,"a"')
    out.append(".p2align 6")
    out.append(f".amdhsa_kernel {NAME}")
    for d in ("next_free_vgpr 256", "next_free_sgpr 102", "accum_offset 256", "group_segment_fixed_size 0", "kernarg_size 64",
              "user_sgpr_count 2", "user_sgpr_kernarg_segment_ptr 1", "system_sgpr_workgroup_id_x 1",
              "float_denorm_mode_32 3"):
        out.append("  .amdhsa_" + d)
    out.append(".end_amdhsa_kernel")
    return "\n".join(out) + "\n"

if __name__ == "__main__":
    kw = json.loads(sys.argv[2]) if len(sys.argv) > 2 else {}
    open(sys.argv[1], "w").write(gen(**kw))
```

```python
import struct, math, sys, json

NAME = "standalone__mha_block_cached__sampling_kernel"
ITEM = 4096 * 384
GRP = 24576
NG = 5
W_P, W_R, W_PR, W_GL = 0x0, 0x18000, 0xB8000, 0xB8800
GSTR = 768
W_END = W_GL + 8 * GSTR
W_STAMP = 0x200000
SLOT = 1552
AROW = 400
L_WO = NG * GRP
L_SLOT = L_WO + 30720
L_Q16 = L_SLOT + 4 * SLOT
L_FLAG = L_Q16 + 1536
L_END = L_FLAG + 64
F_FULL, F_MODE, F_FAST, F_CNT, F_MEET1, F_MEET2 = 0, 8, 12, 16, 32, 36
BUDGET = 0x100000
NINI = 32


def f32(x):
    return "0x%08x" % struct.unpack("<I", struct.pack("<f", x))[0]


def gen(T=16, LV=(18, 19, 20), TH=(7, 22), N0=40, nB=120, n0len=120, S=8, own=3, rot=1, rota=(1, 8), pair=64, swap=1,
        chk0=8, cstart=24, pbias=3, gl=1, gk=3, gsh=5, gmax=11, gper=16, gev=10, gstart=24, grep=64,
        fast1=1, kf=1, k2=8, wof="nt", stamp=0, x_tail=0, x_diag=None, x_tab=0):
    LV = list(LV); TH = list(TH)
    MID = len(LV) // 2
    N = LV[MID]
    NMAX = max(LV)
    LAG = (5 + NMAX) // 6
    PHASE = (5 + NMAX) % 6
    assert 64 % T == 0 and L_END <= 163840
    hs = "sc0 sc1"
    out = []
    A = lambda s: out.append("    " + s)
    Lb = lambda s: out.append(s + ":")
    C = lambda s: out.append("    ; " + s)
    R4 = lambda r: f"v[{r}:{r+3}]"
    R2 = lambda r: f"v[{r}:{r+1}]"
    sWV, sB, sH = "s3", "s40", "s41"
    sG, sR, sFULL, sNEED, sLB, sBUD = "s43", "s44", "s45", "s46", "s47", "s48"
    sT0, sT1, sT2 = "s65", "s66", "s67"
    KS, WS, TS, XS = "s[20:23]", "s[28:31]", "s[32:35]", "s[36:39]"
    sPK, sPV, sPI, sOA, sOB = "s50", "s51", "s52", "s53", "s54"
    sCTL, sCP, sPRL, sPRW, sGL, sBIAS, sRET = "s49", "s50", "s51", "s52", "s54", "s55", "s56"
    sPP, sC, sSELLO, sSELHI, sCHK, sXO, sXCC, sCLS, sFAST = "s62", "s63", "s69", "s70", "s78", "s79", "s94", "s95", "s100"
    vKO, vVO = "v1", "v2"
    M = ["v3", "v4", "v5", "v6"]
    vMC, vM, vL, vDA, vDB = "v7", "v8", "v9", "v10", "v11"
    ACC, Q, XR = 12, 24, 36
    vCA, vFL, vCNT = "v45", "v46", "v47"
    vS0, vS1, vT, vU = "v48", "v49", "v50", "v51"
    A0, A1 = 52, 56
    vMX, vW, vX = "v60", "v62", "v63"
    BUF = 64
    BF, AF, SC = 112, 136, (160 if T < 16 else 208)
    vONE, vHD, vAF, vRA = "v188", "v189", "v190", "v191"
    vPR, vPA, vPZ = "v200", "v201", "v202"
    PL = 208
    assert BUF + 12 * S <= 240 and SC + 2 * T <= 188 or T == 16

    def st(i):
        if stamp: A(f"s_memrealtime s[{80+2*i}:{81+2*i}]")
    cb = [0]
    def class_barrier(cls, times=1):
        cb[0] += 1
        A("s_bitcmp1_b32 s2, 7")
        A(f"s_cbranch_scc{1 - cls} L_cb{cb[0]}")
        for _ in range(times): A("s_barrier")
        Lb(f"L_cb{cb[0]}")
    def next_group():
        A(f"s_add_u32 {sLB}, {sLB}, {GRP}")
        A(f"s_cmp_eq_u32 {sLB}, {NG*GRP}")
        A(f"s_cselect_b32 {sLB}, 0, {sLB}")

    out.append(f"; @launch grid=(256,1,1) block=(320,1,1) lds={L_END}")
    out.append('.amdgcn_target "amdgcn-amd-amdhsa--gfx950"')
    out.append(".text")
    out.append(f".globl {NAME}")
    out.append(".p2align 8")
    out.append(f".type {NAME},@function")
    Lb(NAME)
    A("s_cmp_ge_u32 s2, 256")
    A("s_cbranch_scc1 L_end")
    A("s_load_dwordx16 s[4:19], s[0:1], 0")
    st(0)
    A("v_lshrrev_b32 v1, 6, v0")
    A("v_and_b32 v0, 63, v0")
    A(f"v_readfirstlane_b32 {sWV}, v1")
    A(f"s_lshr_b32 {sB}, s2, 5")
    A(f"s_and_b32 {sH}, s2, 31")
    A("s_mov_b32 s35, 0x20000")
    A("s_mov_b32 s39, 0x20000")
    A("s_mov_b32 s31, 0x20000")
    A(f"s_mov_b32 s30, {W_END if not stamp else W_STAMP + 0x20000}")
    A("s_mov_b32 s38, 10240")
    A(f"s_cmp_lg_u32 {sWV}, 0")
    A("s_cbranch_scc1 L_nopre")
    C("wave 0 touches every 128-byte line of this kernel's code so that it is in L2 when it is needed")
    A("s_getpc_b64 s[76:77]")
    Lb("L_pc")
    A(f"s_add_u32 s76, s76, {NAME}-L_pc")
    A("s_addc_u32 s77, s77, -1")
    A("v_lshlrev_b32 v240, 7, v0")
    for i in range(2):
        if i: A("v_add_u32 v240, 8192, v240")
        A(f"v_min_u32 v241, L_end-{NAME}, v240")
        A(f"global_load_dword v{242+i}, v241, s[76:77]")
    Lb("L_nopre")
    A(f"s_cmp_eq_u32 {sWV}, 4")
    A("s_cbranch_scc1 L_loader")

    C("q = x[b] @ wq[:, head]: 160 rows per wave, 8 rows per step, 16 lanes per 256 bytes of a row")
    A("v_lshrrev_b32 v48, 3, v0")
    A("v_and_b32 v49, 7, v0")
    A("v_lshrrev_b32 v50, 4, v0")
    A("v_and_b32 v51, 15, v0")
    A("v_mul_u32_u24 v60, 49152, v50")
    A("v_lshl_add_u32 v60, v51, 4, v60")
    A("v_add_u32 v62, 24704, v60")
    A("v_add_u32 v61, 256, v60")
    A("v_add_u32 v52, 24448, v60")
    A("v_cmp_gt_u32 vcc, 8, v51")
    A("v_lshlrev_b32 v63, 2, v48")
    A(f"s_mul_i32 {sT0}, {sB}, 1280")
    A("v_cndmask_b32 v61, v52, v61, vcc")
    A(f"s_lshl_b32 {sT1}, {sWV}, 5")
    A(f"s_add_u32 {sXO}, {sT0}, {sT1}")
    C("the eight batches that share a head start on different rows of wq")
    A(f"s_mul_i32 {sPP}, {sB}, 10")
    A(f"s_lshr_b32 {sPP}, {sPP}, 3")
    A(f"s_mul_i32 {sT1}, {sWV}, {16*12288}")
    A(f"s_mul_i32 {sT2}, {sH}, 384")
    A(f"s_add_u32 {sT1}, {sT1}, {sT2}")
    A(f"s_sub_u32 s34, {640*12288}, {sT1}")
    A("s_waitcnt lgkmcnt(0)")
    A("s_mov_b32 s28, s18"); A("s_mov_b32 s29, s19")
    A("s_mov_b32 s36, s4"); A("s_mov_b32 s37, s5")
    A(f"s_add_u32 s32, s10, {sT1}"); A("s_addc_u32 s33, s11, 0")
    A(f"s_cmp_lt_u32 s2, {NINI}")
    A("s_cbranch_scc1 L_init")
    Lb("L_noinit")
    pos = {}
    n = [0]
    def issue_wq(u):
        if u % 2 == 0:
            A(f"s_lshl_b32 s73, {sPP}, 7"); A(f"s_add_u32 s73, s73, {sXO}")
            A(f"s_mul_i32 s72, {sPP}, 786432")
            A(f"buffer_load_dword v{XR + u//2}, v63, {XS}, s73 offen")
            A(f"s_add_u32 {sPP}, {sPP}, 1"); A(f"s_cmp_eq_u32 {sPP}, 10"); A(f"s_cselect_b32 {sPP}, 0, {sPP}")
        else:
            A("s_add_u32 s72, s72, 12288")
        for m, vo in enumerate(("v60", "v61", "v62")):
            A(f"buffer_load_dwordx4 {R4(BUF + 12*(u % S) + 4*m)}, {vo}, {TS}, s72 offen")
        n[0] += 4 if u % 2 == 0 else 3
        pos[u] = n[0]
    for u in range(own): issue_wq(u)
    A("s_branch L_rest")

    Lb("L_loader")
    A("v_lshlrev_b32 v1, 4, v0")
    A(f"s_mul_i32 s72, s2, {ITEM}")
    A(f"s_mul_hi_u32 s73, s2, {ITEM}")
    C("every workgroup starts at a different piece of its keys")
    if rota:
        A(f"s_and_b32 {sPK}, s2, 7"); A(f"s_mul_i32 {sPK}, {sPK}, {rota[0]}"); A(f"s_lshr_b32 {sT0}, s2, 3"); A(f"s_mul_i32 {sT0}, {sT0}, {rota[1]}"); A(f"s_add_u32 {sPK}, {sPK}, {sT0}")
    else:
        A(f"s_mul_i32 {sPK}, s2, {4 * rot}")
    if x_tab:
        A("s_waitcnt lgkmcnt(0)")
        A("s_lshl_b32 s60, s2, 2"); A("s_add_u32 s60, s60, 0x280000"); A(f"s_load_dword {sPK}, s[18:19], s60"); A("s_waitcnt lgkmcnt(0)")
    A(f"s_and_b32 {sPK}, {sPK}, 255")
    A(f"s_mov_b32 {sPI}, {sPK}")
    def piece_offsets():
        if pair == 0:
            A(f"s_mul_i32 {sOA}, {sPI}, 6144"); A(f"s_add_u32 {sOB}, {sOA}, 3072")
        else:
            n0, n1, lg = (11, 10, 5) if pair == 32 else (21, 22, 6)
            A(f"s_and_b32 s60, {sPI}, {(1 << lg) - 1}")
            A(f"s_lshl_b32 {sOA}, {sPI}, 1")
            A(f"s_sub_u32 {sOA}, {sOA}, s60")
            lo0, lo1 = (n0, 0) if (swap and pair == 64) else (0, n1 if swap else 0)
            hi0, hi1 = n0 - lo0, n1 - lo1
            A(f"s_cmp_ge_u32 s60, {n0}")
            A(f"s_cselect_b32 s61, {n0 + lo1}, {lo0}"); A(f"s_cselect_b32 {sOB}, {n0 + hi1}, {hi0}")
            A(f"s_cmp_ge_u32 s60, {n0 + n1}")
            A(f"s_cselect_b32 s61, {n0 + n1 + lo0}, s61"); A(f"s_cselect_b32 {sOB}, {n0 + n1 + hi0}, {sOB}")
            A(f"s_add_u32 {sOB}, {sOB}, {sOA}")
            A(f"s_add_u32 {sOA}, {sOA}, s61")
            A(f"s_mul_i32 {sOA}, {sOA}, 3072"); A(f"s_mul_i32 {sOB}, {sOB}, 3072")
        A(f"s_add_u32 {sPI}, {sPI}, 1"); A(f"s_and_b32 {sPI}, {sPI}, 255")
    def stream_load(k):
        i, r = divmod(k, 6)
        un, m = divmod(r, 3)
        if m == 0: A(f"s_add_u32 m0, {sLB}, {6144*i + 3072*un}")
        return f"buffer_load_dwordx4 v1, {KS}, {sOB if un else sOA} offen offset:{1024*m} nt lds"
    def publish(k=1):
        A(f"v_add_u32 {vCNT}, {k}, {vCNT}")
        A(f"ds_write_b32 {vFL}, {vCNT} offset:{F_FULL}")
    def to_v():
        A("s_mov_b32 s20, s26"); A("s_mov_b32 s21, s27"); A(f"s_mov_b32 {sPI}, {sPK}")
    def to_k():
        A("s_mov_b32 s20, s24"); A("s_mov_b32 s21, s25"); A(f"s_mov_b32 {sPK}, {sPI}")
    piece_offsets()
    A("s_mov_b32 s23, 0x20000"); A(f"s_mov_b32 s22, {ITEM}")
    A(f"v_mov_b32 {vFL}, {L_FLAG}")
    for r in range(4): A(f"v_mov_b32 v{12+r}, 0")
    A(f"v_mov_b32 {vCNT}, 0")
    A(f"v_mov_b32 v17, {MID}")
    A(f"s_mov_b32 {sLB}, 0"); A(f"s_mov_b32 {sBUD}, 0")
    C("flags: landed pieces, depth level, the consumers' read counts, meeting counters")
    A(f"ds_write_b128 {vFL}, v[12:15]")
    A(f"ds_write_b128 {vFL}, v[12:15] offset:16")
    A(f"ds_write_b128 {vFL}, v[12:15] offset:32")
    A(f"ds_write_b32 {vFL}, v17 offset:{F_MODE}")
    A("s_waitcnt lgkmcnt(0)")
    A("s_add_u32 s24, s6, s72"); A("s_addc_u32 s25, s7, s73")
    A("s_add_u32 s26, s8, s72"); A("s_addc_u32 s27, s9, s73")
    A("s_mov_b32 s20, s24"); A("s_mov_b32 s21, s25")
    C("start-up: fill the ring, then fetch the wo rows of this workgroup's 80 output columns.")
    C("Batches 0..3 read wq first and stream afterwards, batches 4..7 the other way round.")
    ops = [("g", g, k) for g in range(NG) for k in range(24)] + [("w", i, 0) for i in range(30)]
    last_of_piece = [i for i, (kind, g, k) in enumerate(ops) if kind == "g" and k % 6 == 5]
    win = lambda z: N0 if z < n0len else N
    pub = 0
    for i, (kind, g, k) in enumerate(ops):
        if i == 24:
            A("s_mov_b32 s28, s18"); A("s_mov_b32 s29, s19")
            A("s_mov_b32 s36, s14"); A("s_mov_b32 s37, s15")
            A(f"s_mul_i32 {sT0}, {sH}, {192*1280}"); A(f"s_mul_i32 {sT2}, {sB}, 160"); A(f"s_add_u32 {sT0}, {sT0}, {sT2}")
            A(f"s_add_u32 s32, s12, {sT0}"); A("s_addc_u32 s33, s13, 0")
            A(f"s_sub_u32 s34, {6144*1280}, {sT0}")
            C("16-byte piece p of a 32-row block of wo is piece p%10 of row p/10")
            for t in range(5):
                A(f"v_add_u32 v2, {64*t}, v0"); A("v_mul_u32_u24 v3, 6554, v2"); A("v_lshrrev_b32 v3, 16, v3")
                A("v_mul_u32_u24 v3, 1120, v3"); A(f"v_lshl_add_u32 v{20+t}, v2, 4, v3")
        if i == 0: class_barrier(0)
        if i == nB: class_barrier(1, 2)
        if kind == "g":
            ins = stream_load(k)
            if i < win(i) and k % 3 == 0: A("s_nop 0")
        else:
            m, t = divmod(g, 5)
            A(f"s_mov_b32 m0, {L_WO + 1024*g}")
            A(f"s_mov_b32 {sT2}, {40960*m}")
            ins = f"buffer_load_dwordx4 v{20+t}, {TS}, {sT2} offen {wof} lds"
        if i >= win(i): A(f"s_waitcnt vmcnt({win(i) - 1})")
        A(ins)
        if pub < 4 * NG - LAG and last_of_piece[pub] <= i - win(i):
            publish(); pub += 1
        if kind == "g" and k % 6 == 5:
            if k == 23:
                next_group()
                r = (g + 1) % (2 * T)
                if r == T: to_v()
                if r == 0: to_k()
            piece_offsets()
    if nB >= len(ops): class_barrier(1, 2)
    want = 4 * NG - LAG
    if pub < want:
        A(f"s_waitcnt vmcnt({len(ops) - 1 - last_of_piece[want - 1]})")
        publish(want - pub)
    A(f"s_mov_b32 {sG}, {NG}")
    A(f"ds_read_b128 v[12:15], {vFL} offset:{F_CNT}")
    out.append(".p2align 6")
    Lb("L_load")
    C("the four slots about to be refilled must have been read")
    A("s_waitcnt lgkmcnt(0)")
    A("v_min3_u32 v16, v12, v13, v14")
    A("v_min_u32 v16, v16, v15")
    A(f"v_readfirstlane_b32 {sT2}, v17")
    A(f"v_readfirstlane_b32 {sT0}, v16")
    A(f"s_add_u32 {sT0}, {sT0}, {NG - 1}")
    A(f"s_cmp_ge_u32 {sT0}, {sG}")
    A("s_cbranch_scc0 L_wait")
    Lb("L_go")
    for i in range(1, len(LV)):
        A(f"s_cmp_eq_u32 {sT2}, {i}")
        A(f"s_cbranch_scc1 L_lv{i}")
    for i, w in enumerate(LV):
        if i: Lb(f"L_lv{i}")
        C(f"one group with {w} loads in flight")
        for k in range(24):
            ins = stream_load(k)
            A(f"s_waitcnt vmcnt({w - 1})")
            A(ins)
            if k % 6 == PHASE: publish()
            if k % 6 == 5 and k < 23: piece_offsets()
            if k == 20:
                A(f"ds_read_b128 v[12:15], {vFL} offset:{F_CNT}")
                A(f"ds_read_b32 v17, {vFL} offset:{F_MODE}")
        if i < len(LV) - 1: A("s_branch L_join")
    Lb("L_join")
    next_group()
    A(f"s_add_u32 {sG}, {sG}, 1")
    A(f"s_and_b32 {sT0}, {sG}, {T - 1}")
    A(f"s_cmp_lg_u32 {sT0}, 0")
    A("s_cbranch_scc1 L_same")
    A(f"s_bitcmp1_b32 {sG}, {T.bit_length() - 1}")
    A("s_cbranch_scc1 L_tov")
    to_k()
    A("s_branch L_same")
    Lb("L_tov")
    to_v()
    Lb("L_same")
    piece_offsets()
    A(f"s_cmp_lt_u32 {sG}, 128")
    A("s_cbranch_scc1 L_load")
    C("drain")
    for p in range(LAG):
        A(f"s_waitcnt vmcnt({6*(LAG-1-p)})")
        publish()
    st(1)
    A("s_branch L_tail")
    Lb("L_wait")
    A(f"s_add_u32 {sBUD}, {sBUD}, 1")
    A(f"s_cmp_gt_u32 {sBUD}, {BUDGET}")
    A("s_cbranch_scc1 L_go")
    A(f"ds_read_b128 v[12:15], {vFL} offset:{F_CNT}")
    A("s_branch L_load")

    out.append(".p2align 6")
    Lb("L_init")
    C(f"the first {NINI} workgroups mark all hand-off words as empty")
    per_wave = W_END // (NINI * 4)
    assert per_wave * NINI * 4 == W_END and per_wave % 16 == 0
    for r in range(4): A(f"v_mov_b32 v{Q+r}, -1")
    A("v_lshlrev_b32 v56, 4, v0")
    A("s_lshl_b32 s74, s2, 2"); A(f"s_add_u32 s74, s74, {sWV}"); A(f"s_mul_i32 s74, s74, {per_wave}")
    for i in range(0, per_wave, 1024):
        if i and i % 4096 == 0: A("s_add_u32 s74, s74, 4096")
        left = (per_wave - i) // 16
        if left < 64:
            A(f"s_mov_b32 exec_lo, {hex((1 << min(left, 32)) - 1)}"); A(f"s_mov_b32 exec_hi, {hex((1 << max(left - 32, 0)) - 1)}")
        A(f"buffer_store_dwordx4 {R4(Q)}, v56, {WS}, s74 offen offset:{i % 4096} {hs}")
    A("s_mov_b64 exec, -1")
    A("s_branch L_noinit")

    def dump_acc():
        A("s_mov_b32 exec_hi, 0")
        A(f"ds_write_b128 {vDA}, {R4(ACC)}")
        A("s_mov_b32 exec_lo, 0"); A("s_mov_b32 exec_hi, -1")
        A(f"ds_write_b128 {vDA}, {R4(ACC+8)} offset:256")
        A("s_mov_b32 exec_lo, 0x00ff00ff"); A("s_mov_b32 exec_hi, 0xff00ff00")
        A(f"ds_write_b128 {vDB}, {R4(ACC+4)}")
        A("s_mov_b64 exec, -1")
    def arrive(off):
        A("s_waitcnt lgkmcnt(0)")
        A("s_mov_b64 exec, 1")
        A(f"ds_add_u32 {vFL}, {vONE} offset:{off}")
        A("s_mov_b64 exec, -1")
    def spin(lbl, off, want):
        Lb(lbl)
        A(f"ds_read_b32 {vX}, {vFL} offset:{off}")
        A(f"s_add_u32 {sBUD}, {sBUD}, 1")
        A("s_waitcnt lgkmcnt(0)")
        A(f"v_readfirstlane_b32 {sT0}, {vX}")
        A(f"s_cmp_gt_u32 {sBUD}, {BUDGET}")
        A(f"s_cselect_b32 {sT0}, {want}, {sT0}")
        A(f"s_cmp_lt_u32 {sT0}, {want}")
        A(f"s_cbranch_scc1 {lbl}")
    def setup():
        C("set-up that overlaps the loads in flight")
        A(f"s_mov_b32 {sC}, {f32(192 ** -0.5 * math.log2(math.e))}")
        A(f"s_mov_b32 {sSELLO}, 0x01000100"); A(f"s_mov_b32 {sSELHI}, 0x03020302")
        A(f"s_mov_b32 {sG}, 0"); A(f"s_mov_b32 {sFULL}, 0"); A(f"s_mov_b32 {sBUD}, 0"); A(f"s_mov_b32 {sLB}, 0")
        A(f"s_mov_b32 {sCTL}, 0"); A(f"s_mov_b32 {sCP}, 0"); A(f"s_mov_b32 {sFAST}, 0")
        C("group at which this wave checks that the hand-off words are marked (wave 1; waves 2, 3 of eight workgroups)")
        A(f"s_lshr_b32 {sCHK}, s2, 3"); A(f"s_and_b32 {sCHK}, {sCHK}, 15"); A(f"s_add_u32 {sCHK}, {sCHK}, {chk0}")
        A(f"s_cmp_eq_u32 {sWV}, 1"); A(f"s_cselect_b32 {sCHK}, {sCHK}, 1000")
        if gl:
            A(f"s_sub_u32 {sT1}, s2, {grep}")
            A(f"s_cmp_ge_u32 {sWV}, 2"); A(f"s_cselect_b32 {sT0}, {sT1}, 100"); A(f"s_cmp_lt_u32 {sT0}, 8"); A(f"s_cselect_b32 {sCHK}, {chk0 + 4}, {sCHK}")
        A(f"s_getreg_b32 {sXCC}, hwreg(HW_REG_XCC_ID)"); A(f"s_and_b32 {sXCC}, {sXCC}, 15")
        A(f"s_bitcmp1_b32 {sXCC}, 0"); A(f"s_cselect_b32 {sBIAS}, {-pbias}, {pbias}")
        A(f"s_and_b32 {sCLS}, s2, 7")
        A(f"s_lshl_b32 {sPRL}, {sCLS}, 8"); A(f"s_add_u32 {sPRL}, {sPRL}, {W_PR}")
        A(f"s_lshr_b32 {sPRW}, s2, 3"); A(f"s_lshl_b32 {sPRW}, {sPRW}, 2"); A(f"s_add_u32 {sPRW}, {sPRW}, {sPRL}")
        A(f"s_mov_b32 {sGL}, {W_GL}")
        C("LDS read offsets: K rows are read 8 lanes per key, V rows 16 lanes per 256 bytes")
        A(f"s_mul_i32 {sT0}, {sWV}, 6144")
        A(f"v_mul_u32_u24 {vKO}, 384, v48")
        A(f"v_lshl_add_u32 {vKO}, v49, 4, {vKO}")
        A(f"v_add_u32 {vKO}, {sT0}, {vKO}")
        A(f"v_mul_u32_u24 {vVO}, 768, v50")
        A(f"v_lshl_add_u32 {vVO}, v51, 4, {vVO}")
        A(f"v_add_u32 {vVO}, {sT0}, {vVO}")
        C("diagonal-operand masks: register r keeps element (lane&7) when (lane&7)>>1 == r")
        A("v_and_b32 v52, 1, v0")
        A("v_lshlrev_b32 v52, 4, v52")
        A("v_mov_b32 v53, 0xffff")
        A("v_lshlrev_b32 v52, v52, v53")
        A("v_lshrrev_b32 v53, 1, v49")
        for r in range(4):
            A(f"v_cmp_eq_u32 vcc, {r}, v53")
            A("s_nop 1")
            A(f"v_cndmask_b32 {M[r]}, 0, v52, vcc")
        C("LDS addresses of the accumulator dump")
        A("v_and_b32 v52, 1, v50")
        A("v_lshlrev_b32 v52, 4, v52")
        A("v_lshl_add_u32 v52, v51, 5, v52")
        A("v_cmp_gt_u32 vcc, 32, v0")
        A("v_add_u32 v53, 768, v52")
        A(f"v_add_u32 {vDB}, 512, v52")
        A(f"v_cndmask_b32 {vDA}, v53, v52, vcc")
        A(f"s_mul_i32 {sT1}, {sWV}, {SLOT}")
        A(f"s_add_u32 {sT1}, {sT1}, {L_SLOT}")
        A(f"v_add_u32 {vDA}, {sT1}, {vDA}")
        A(f"v_add_u32 {vDB}, {sT1}, {vDB}")
        for r in range(12): A(f"v_mov_b32 v{ACC+r}, 0")
        A(f"v_mov_b32 {vL}, 0")
        A(f"v_mov_b32 {vM}, {f32(-3.0e38)}")
        A(f"v_mul_f32 {vMC}, {sC}, {vM}")
        A(f"v_mov_b32 {vONE}, 1"); A(f"v_mov_b32 {vRA}, 0")
        A(f"v_mov_b32 {vPR}, -1"); A(f"v_lshlrev_b32 {vPA}, 2, v0"); A(f"v_mov_b32 {vPZ}, 0"); A("v_mov_b32 v205, 0")
        for r in range(2 * T): A(f"v_mov_b32 v{SC+r}, 0")
    def consume(u):
        if u == 0: setup()
        a = A0 if u % 2 == 0 else A1
        if u % 2 == 0:
            A(f"s_waitcnt vmcnt({n[0] - pos[u] + 3})")
        A(f"v_perm_b32 {vT}, v{XR + u//2}, v{XR + u//2}, {sSELLO if u % 2 == 0 else sSELHI}")
        for r in range(4): A(f"v_and_b32 v{a+r}, {vT}, {M[r]}")
        A(f"s_waitcnt vmcnt({n[0] - pos[u]})")
        A("s_nop 0")
        for m in range(3):
            A(f"v_mfma_f32_16x16x32_bf16 {R4(ACC+4*m)}, {R4(a)}, {R4(BUF + 12*(u % S) + 4*m)}, {R4(ACC+4*m)}")
    Lb("L_rest")
    class_barrier(1)
    for step in range(own, 20 + S):
        if step >= S: consume(step - S)
        if step < 20: issue_wq(step)
        if step == 19: A("s_barrier")
    A(f"s_mul_i32 {sT0}, {sWV}, 384")
    A(f"s_add_u32 {sT0}, {sT0}, {L_Q16}")
    A(f"v_lshl_add_u32 v57, v0, 3, {sT0}")
    A(f"v_lshl_add_u32 v58, v49, 4, {sT0}")
    A(f"s_mov_b32 {sT1}, {L_SLOT}")
    A(f"v_lshl_add_u32 v56, v0, 4, {sT1}")
    A(f"v_mov_b32 {vFL}, {L_FLAG}")
    A(f"v_mov_b32 {vCNT}, 0")
    dump_acc()
    C("the four consumers meet on a counter in LDS; the loader keeps running")
    arrive(F_MEET1)
    spin("L_meet1", F_MEET1, 4)
    A("s_mov_b32 exec_hi, 0xffff")
    tmp = [24, 28, 32, 36, 40, 64, 12, 16]
    for i in range(8):
        A(f"ds_read_b128 {R4(tmp[i])}, v56 offset:{SLOT*(i >> 1) + 768*(i & 1)}")
    for i in range(1, 8):
        A(f"s_waitcnt lgkmcnt({7-i})")
        for k in range(4): A(f"v_add_f32 v{24+k}, v{24+k}, v{tmp[i]+k}")
    A("v_cvt_pk_bf16_f32 v24, v24, v25")
    A("v_cvt_pk_bf16_f32 v25, v26, v27")
    A("ds_write_b64 v57, v[24:25]")
    A("s_mov_b32 exec_hi, -1")
    for r in range(12): A(f"v_mov_b32 v{ACC+r}, 0")
    A(f"s_lshl_b32 {sT0}, {sWV}, 2"); A(f"s_add_u32 {sT0}, {sT0}, {L_FLAG + F_CNT}")
    A(f"v_mov_b32 {vCA}, {sT0}")
    A(f"s_add_u32 {sNEED}, {sWV}, 1")
    A("s_waitcnt lgkmcnt(0)")
    for m in range(3):
        A(f"ds_read_b128 {R4(Q+4*m)}, v58 offset:{128*m}")
    C("all four waves have seen their marking stores complete: count this workgroup as ready")
    A(f"s_cmp_ge_u32 s2, {NINI}")
    A("s_cbranch_scc1 L_nosig")
    A(f"s_cmp_lg_u32 {sWV}, 3")
    A("s_cbranch_scc1 L_nosig")
    A("s_mov_b64 exec, 1")
    A(f"global_atomic_add {vPZ}, {vONE}, s[16:17]")
    A("s_mov_b64 exec, -1")
    Lb("L_nosig")
    st(1)

    def wait_full(tag):
        A(f"s_cmp_ge_u32 {sFULL}, {sNEED}")
        A(f"s_cbranch_scc1 L_have{tag}")
        Lb(f"L_poll{tag}")
        A(f"ds_read_b32 {vX}, {vFL} offset:{F_FULL}")
        A(f"s_add_u32 {sBUD}, {sBUD}, 1")
        A("s_waitcnt lgkmcnt(0)")
        A(f"v_readfirstlane_b32 {sFULL}, {vX}")
        A(f"s_cmp_ge_u32 {sFULL}, {sNEED}")
        A(f"s_cbranch_scc1 L_have{tag}")
        A(f"s_cmp_gt_u32 {sBUD}, {BUDGET}")
        A(f"s_cbranch_scc0 L_poll{tag}")
        Lb(f"L_have{tag}")
    def side_jobs(ph):
        A(f"s_add_u32 {sG}, {sG}, 1")
        A(f"s_cmp_ge_u32 {sG}, {sCHK}")
        A(f"s_mov_b32 {sRET}, {ph}")
        A("s_cbranch_scc1 L_side")
        Lb(f"L_side_ret{ph}")
    out.append(".p2align 6")
    Lb("L_batch")
    A(f"v_mov_b32 {vMX}, {vM}")
    Lb("L_kloop")
    C("scores of 16 keys")
    A(f"v_add_u32 {vW}, {sLB}, {vKO}")
    wait_full("k")
    for u in range(2):
        for m in range(3):
            A(f"ds_read_b128 {R4(BUF + 12*u + 4*m)}, {vW} offset:{3072*u + 128*m}")
    next_group()
    A(f"v_mov_b32 {vS0}, 0"); A(f"v_mov_b32 {vS1}, 0")
    A(f"v_add_u32 {vCNT}, 1, {vCNT}")
    A(f"s_add_u32 {sNEED}, {sNEED}, 4")
    for r in range(2 * T - 2): A(f"v_mov_b32 v{SC+r}, v{SC+r+2}")
    A("s_waitcnt lgkmcnt(0)")
    A(f"ds_write_b32 {vCA}, {vCNT}")
    for k in range(12):
        A(f"v_dot2c_f32_bf16 {vS0}, v{BUF+k}, v{Q+k}")
        A(f"v_dot2c_f32_bf16 {vS1}, v{BUF+12+k}, v{Q+k}")
    side_jobs(0)
    for dpp in ("quad_perm:[1,0,3,2]", "quad_perm:[2,3,0,1]"):
        A(f"v_add_f32_dpp {vS0}, {vS0}, {vS0} {dpp} row_mask:0xf bank_mask:0xf")
        A(f"v_add_f32_dpp {vS1}, {vS1}, {vS1} {dpp} row_mask:0xf bank_mask:0xf")
        A("s_nop 0")
    A(f"v_add_f32_dpp v{SC+2*T-2}, {vS0}, {vS0} row_half_mirror row_mask:0xf bank_mask:0xf")
    A(f"v_add_f32_dpp v{SC+2*T-1}, {vS1}, {vS1} row_half_mirror row_mask:0xf bank_mask:0xf")
    A(f"s_and_b32 {sT0}, {sG}, {T - 1}")
    A(f"s_cmp_lg_u32 {sT0}, 0")
    A(f"v_max3_f32 {vMX}, {vMX}, v{SC+2*T-2}, v{SC+2*T-1}")
    A("s_cbranch_scc1 L_kloop")
    A(f"v_cmp_gt_f32 vcc, {vMX}, {vM}")
    A("s_cbranch_vccnz L_resc")
    Lb("L_back")
    for r in range(2 * T): A(f"v_fma_f32 v{SC+r}, v{SC+r}, {sC}, -{vMC}")
    for r in range(2 * T): A(f"v_exp_f32 v{SC+r}, v{SC+r}")
    A(f"s_cmp_eq_u32 {sG}, {128 - T}")
    for r in range(2 * T): A(f"v_add_f32 {vL}, {vL}, v{SC+r}")
    A("s_cbranch_scc1 L_last")
    Lb("L_vloop")
    C("weighted values of 16 keys")
    A(f"v_add_u32 {vW}, {sLB}, {vVO}")
    A(f"v_cvt_pk_bf16_f32 {vT}, v{SC}, v{SC}")
    A(f"v_cvt_pk_bf16_f32 {vU}, v{SC+1}, v{SC+1}")
    for r in range(2 * T - 2): A(f"v_mov_b32 v{SC+r}, v{SC+r+2}")
    for k in range(4): A(f"v_and_b32 v{A0+k}, {vT}, {M[k]}")
    for k in range(4): A(f"v_and_b32 v{A1+k}, {vU}, {M[k]}")
    wait_full("v")
    for u in range(2):
        for m in range(3):
            A(f"ds_read_b128 {R4(BUF + 24 + 12*u + 4*m)}, {vW} offset:{3072*u + 256*m}")
    next_group()
    A(f"v_add_u32 {vCNT}, 1, {vCNT}")
    A(f"s_add_u32 {sNEED}, {sNEED}, 4")
    for u, a in enumerate((A0, A1)):
        for m in range(3):
            A(f"s_waitcnt lgkmcnt({5 - 3*u - m})")
            A(f"v_mfma_f32_16x16x32_bf16 {R4(ACC+4*m)}, {R4(a)}, {R4(BUF+24+12*u+4*m)}, {R4(ACC+4*m)}")
    A(f"s_cmp_eq_u32 {sG}, 127")
    A("s_cbranch_scc1 L_done")
    A(f"ds_write_b32 {vCA}, {vCNT}")
    side_jobs(1)
    A(f"s_and_b32 {sT0}, {sG}, {T - 1}")
    A(f"s_cmp_lg_u32 {sT0}, 0")
    A("s_cbranch_scc1 L_vloop")
    A("s_branch L_batch")

    Lb("L_resc")
    C("the running maximum rises: rescale the sums")
    A(f"v_max_f32_dpp {vT}, {vMX}, {vMX} row_ror:8 row_mask:0xf bank_mask:0xf")
    A("s_nop 0")
    A(f"v_mov_b32 {vU}, {vT}")
    A("s_nop 1")
    A(f"v_permlane16_swap_b32 {vU}, {vT}")
    A(f"v_max_f32 {vT}, {vT}, {vU}")
    A(f"v_mov_b32 {vU}, {vT}")
    A("s_nop 1")
    A(f"v_permlane32_swap_b32 {vU}, {vT}")
    A(f"v_max_f32 {vM}, {vT}, {vU}")
    A(f"v_mul_f32 {vT}, {sC}, {vM}")
    A(f"v_sub_f32 {vU}, {vMC}, {vT}")
    A(f"v_exp_f32 {vU}, {vU}")
    A(f"v_mov_b32 {vMC}, {vT}")
    A(f"v_mul_f32 {vL}, {vL}, {vU}")
    for k in range(12): A(f"v_mul_f32 v{ACC+k}, v{ACC+k}, {vU}")
    A("s_branch L_back")

    Lb("L_side")
    A(f"s_cmp_lg_u32 {sCTL}, 0")
    A("s_cbranch_scc1 L_ctl")
    C("no hand-off word is used before all of them are marked; ask again one group later if they are not")
    Lb("L_ask")
    A(f"s_load_dword {sT0}, s[16:17], 0 glc")
    A(f"s_add_u32 {sBUD}, {sBUD}, 4")
    A(f"s_cmp_gt_u32 {sBUD}, {BUDGET}")
    A("s_waitcnt lgkmcnt(0)")
    A("s_cbranch_scc1 L_ready")
    A(f"s_cmp_ge_u32 {sT0}, {NINI}")
    A("s_cbranch_scc1 L_ready")
    A(f"s_cmp_ge_u32 {sG}, {120 - T}")
    A("s_cbranch_scc1 L_ask")
    A("s_branch L_side_ret")
    Lb("L_ready")
    A(f"s_mov_b32 {sCTL}, {sWV}")
    if gl:
        A(f"s_cmp_ge_u32 {sWV}, 2")
        A("s_cbranch_scc0 L_side_ret")
        A(f"v_mul_u32_u24 {vPA}, {GSTR}, v0")
        A(f"s_mul_i32 {sPRW}, {sCLS}, {GSTR}"); A(f"s_add_u32 {sPRW}, {sPRW}, {W_GL}")
    A("s_branch L_side_ret")
    Lb("L_ctl")
    if gl:
        A(f"s_cmp_ge_u32 {sCTL}, 2")
        A("s_cbranch_scc1 L_glb")
    C("depth level from this workgroup's arrival rank among the 32 workgroups with the same id%8")
    A("s_waitcnt vmcnt(0)")
    if fast1:
        A(f"s_cmp_lg_u32 {sG}, {122 - T}")
        A("s_cbranch_scc1 L_nofast")
        C("the rows of o may go through L2 when the eight workgroups of this head report the same XCD")
        A(f"v_and_b32 v203, 0x8000000f, {vPR}")
        A(f"v_cmp_eq_u32 vcc, {sXCC}, v203")
        A(f"s_bfe_u32 {sT0}, s2, 0x20003")
        A(f"s_lshl_b32 {sT0}, 0x11111111, {sT0}")
        A(f"s_and_b32 {sT1}, vcc_lo, {sT0}")
        A(f"s_cmp_eq_u32 {sT1}, {sT0}")
        A(f"s_cselect_b32 {sT0}, 1, 0")
        A(f"v_mov_b32 v203, {sT0}")
        A(f"ds_write_b32 {vFL}, v203 offset:{F_FAST}")
        Lb("L_nofast")
    A("s_mov_b32 exec_hi, 1")
    A(f"v_cmp_le_i32 vcc, {sCP}, {vPR}")
    A(f"v_readlane_b32 {sT2}, {vPR}, 32")
    A(f"s_lshl_b32 {sCP}, {sG}, 4")
    A(f"s_or_b32 {sT1}, {sCP}, {sXCC}")
    A(f"v_mov_b32 v204, {sT1}")
    A(f"s_bcnt1_i32_b32 {sT0}, vcc_lo")
    A(f"buffer_load_dword {vPR}, {vPA}, {WS}, {sPRL} offen nt")
    A("s_mov_b64 exec, 1")
    A(f"buffer_store_dword v204, {vPZ}, {WS}, {sPRW} offen")
    A(f"s_add_i32 {sT2}, {sT2}, 1"); A(f"s_add_i32 {sT0}, {sT0}, {sT2}")
    A(f"s_add_i32 {sT0}, {sT0}, {sBIAS}")
    A(f"s_mov_b32 {sT1}, 0")
    for i, t in enumerate(TH):
        A(f"s_cmp_ge_i32 {sT0}, {t}"); A(f"s_cselect_b32 {sT1}, {i + 1}, {sT1}")
    A(f"s_cmp_lt_u32 {sG}, {cstart}"); A(f"s_cselect_b32 {sT1}, {MID}, {sT1}")
    A(f"v_mov_b32 v203, {sT1}")
    A(f"ds_write_b32 {vFL}, v203 offset:{F_MODE}")
    A("s_mov_b64 exec, -1")
    if gl:
        A("s_branch L_side_ret")
        Lb("L_glb")
        C("one workgroup per id%8 class compares its class's progress with the other seven")
        A(f"s_and_b32 {sT0}, {sG}, {gper - 1}")
        A(f"s_cmp_eq_u32 {sCTL}, 2")
        A("s_cbranch_scc1 L_glb_read")
        A(f"s_cmp_lg_u32 {sT0}, 0")
        A("s_cbranch_scc1 L_side_ret")
        A(f"s_cmp_gt_u32 {sG}, 120")
        A("s_cbranch_scc1 L_side_ret")
        A(f"v_mov_b32 v204, {sG}")
        A("s_mov_b64 exec, 1")
        A(f"buffer_store_dword v204, {vPZ}, {WS}, {sPRW} offen sc1")
        A("s_mov_b64 exec, -1")
        A("s_branch L_side_ret")
        Lb("L_glb_read")
        A("s_mov_b64 exec, 0xff")
        A("s_waitcnt vmcnt(0)")
        A(f"v_add_u32 v205, v205, {vPR}")
        A(f"buffer_load_dword {vPR}, {vPA}, {WS}, {sGL} offen sc1")
        A(f"s_cmp_eq_u32 {sT0}, {gev}")
        A("s_cbranch_scc0 L_glb_done")
        A(f"v_readlane_b32 {sT1}, v205, {sCLS}")
        A("v_add_u32_dpp v206, v205, v205 quad_perm:[1,0,3,2] row_mask:0xf bank_mask:0xf")
        A("v_mov_b32 v205, 0")
        A("s_nop 0")
        A("v_add_u32_dpp v206, v206, v206 quad_perm:[2,3,0,1] row_mask:0xf bank_mask:0xf")
        A("s_nop 1")
        A("v_add_u32_dpp v206, v206, v206 row_half_mirror row_mask:0xf bank_mask:0xf")
        A(f"s_lshl_b32 {sT1}, {sT1}, 3")
        A(f"v_readfirstlane_b32 {sT2}, v206")
        A(f"s_sub_i32 {sT1}, {sT2}, {sT1}")
        A(f"s_mul_i32 {sT1}, {sT1}, {gk}")
        A(f"s_ashr_i32 {sT1}, {sT1}, {gsh}")
        A(f"s_min_i32 {sT1}, {sT1}, {gmax}"); A(f"s_max_i32 {sT1}, {sT1}, {-gmax}")
        A(f"s_cmp_lt_u32 {sG}, {gstart}"); A(f"s_cselect_b32 {sT1}, 0, {sT1}")
        A(f"s_sub_i32 {sT1}, {sT1}, 1")
        A(f"v_mov_b32 v207, {sT1}")
        A("s_mov_b64 exec, 1")
        A(f"buffer_store_dword v207, {vPZ}, {WS}, {sPRL} offen offset:128")
        Lb("L_glb_done")
        A("s_mov_b64 exec, -1")
    Lb("L_side_ret")
    A(f"s_cmp_eq_u32 {sRET}, 0")
    A("s_cbranch_scc1 L_side_ret0")
    A("s_branch L_side_ret1")

    def tail_setup():
        C("wo fragments (transposing reads) and the addresses of the tail")
        A("v_and_b32 v48, 3, v0"); A("v_lshlrev_b32 v48, 3, v48")
        A("v_lshrrev_b32 v49, 2, v0"); A("v_and_b32 v50, 3, v49"); A("v_mul_u32_u24 v50, 160, v50"); A("v_add_u32 v48, v50, v48")
        A("v_lshrrev_b32 v50, 4, v0"); A("v_mul_u32_u24 v49, 1280, v50"); A("v_add_u32 v48, v49, v48")
        A(f"s_lshl_b32 {sT0}, {sWV}, 5"); A(f"s_add_u32 {sT0}, {sT0}, {L_WO}")
        A(f"v_add_u32 v49, {sT0}, v48")
        for m in range(6):
            for hh in range(2):
                A(f"ds_read_b64_tr_b16 {R2(BF + 4*m + 2*hh)}, v49 offset:{5120*m + 640*hh}")
        A("v_and_b32 v48, 7, v0"); A(f"v_mul_u32_u24 {vAF}, {AROW}, v48"); A(f"v_lshl_add_u32 {vAF}, v50, 4, {vAF}"); A(f"v_add_u32 {vAF}, {L_ARX}, {vAF}")
        A("v_and_b32 v48, 1, v50"); A("v_lshrrev_b32 v49, 1, v50"); A("v_lshl_add_u32 v48, v48, 1, v49")
        A("v_and_b32 v49, 15, v0"); A("v_lshlrev_b32 v49, 3, v49"); A(f"v_lshl_add_u32 {vRA}, v48, 7, v49")
        A(f"s_mul_i32 s57, {sH}, 40"); A(f"s_mul_i32 {sT0}, {sB}, 5"); A(f"s_add_u32 s57, s57, {sT0}"); A(f"s_add_u32 s57, s57, {sWV}")
        A("s_lshl_b32 s57, s57, 9"); A(f"s_add_u32 s57, s57, {W_R}")
    L_ARX = 0
    Lb("L_last")
    C("the four waves agree on the maximum and the sum before the last values arrive")
    A(f"s_lshl_b32 {sT0}, {sWV}, 3"); A(f"s_add_u32 {sT0}, {sT0}, {L_Q16}")
    A(f"v_add_f32_dpp {vT}, {vL}, {vL} row_ror:8 row_mask:0xf bank_mask:0xf")
    A(f"v_mov_b32 {vHD}, {sT0}")
    A(f"v_mov_b32 {vU}, {vT}")
    A(f"v_mov_b32 v52, {vMC}")
    A("s_nop 0")
    A(f"v_permlane16_swap_b32 {vU}, {vT}")
    A(f"v_add_f32 {vT}, {vT}, {vU}")
    A(f"v_mov_b32 {vU}, {vT}")
    A("s_nop 1")
    A(f"v_permlane32_swap_b32 {vU}, {vT}")
    A(f"v_add_f32 v53, {vT}, {vU}")
    A(f"ds_write_b64 {vHD}, v[52:53]")
    arrive(F_MEET2)
    tail_setup()
    A(f"v_mov_b32 {vHD}, {L_Q16}")
    spin("L_meet2", F_MEET2, 4)
    A(f"ds_read_b128 v[64:67], {vHD}")
    A(f"ds_read_b128 v[68:71], {vHD} offset:16")
    A(f"ds_read_b32 v74, {vFL} offset:{F_FAST}")
    A("s_waitcnt lgkmcnt(0)")
    A(f"v_readfirstlane_b32 {sFAST}, v74")
    A("v_max3_f32 v72, v64, v66, v68")
    A("v_max_f32 v72, v72, v70")
    for v in range(4): A(f"v_sub_f32 v{64+2*v}, v{64+2*v}, v72")
    A(f"v_sub_f32 v72, {vMC}, v72")
    for v in range(4): A(f"v_exp_f32 v{64+2*v}, v{64+2*v}")
    A("v_exp_f32 v72, v72")
    A("v_mul_f32 v73, v64, v65")
    for v in range(1, 4): A(f"v_fmac_f32 v73, v{64+2*v}, v{65+2*v}")
    A("v_rcp_f32 v73, v73")
    A(f"s_mov_b32 {sT1}, {L_SLOT}")
    A("v_mul_f32 v72, v72, v73")
    for r in range(2 * T): A(f"v_mul_f32 v{SC+r}, v{SC+r}, v72")
    for k in range(12): A(f"v_mul_f32 v{ACC+k}, v{ACC+k}, v72")
    C("addresses for the merge (wave 0) and for the gather of the eight rows of o of this head (waves 1..3)")
    A(f"v_lshl_add_u32 v74, v0, 4, {sT1}")
    A("v_lshlrev_b32 v75, 3, v0"); A("v_lshlrev_b32 v76, 4, v0")
    A(f"s_sub_u32 {sT2}, {sWV}, 1")
    A(f"s_lshl_b32 {sT1}, {sT2}, 6"); A(f"v_add_u32 v77, {sT1}, v0")
    A("v_mul_u32_u24 v78, 2731, v77"); A("v_lshrrev_b32 v78, 16, v78"); A("v_add_u32 v77, v77, v78")
    A("v_lshlrev_b32 v77, 4, v77")
    A(f"s_mul_i32 s58, {sH}, 3072"); A(f"s_lshl_b32 {sT1}, {sT2}, 10"); A(f"s_mul_i32 {sT2}, {sB}, 384")
    A(f"s_cmp_eq_u32 {sWV}, 0"); A(f"s_cselect_b32 {sT1}, {sT2}, {sT1}"); A(f"s_add_u32 s58, s58, {sT1}")
    A("s_branch L_vloop")

    Lb("L_done")
    A("s_nop 3")
    dump_acc()
    st(2)
    A("s_waitcnt lgkmcnt(0)")
    A("s_barrier")
    st(3)
    A(f"s_cmp_lg_u32 {sWV}, 0")
    A("s_cbranch_scc1 L_gather")
    A("s_mov_b32 exec_hi, 0xffff")
    for i in range(8):
        A(f"ds_read_b128 {R4(PL + 4*i)}, v74 offset:{SLOT*(i >> 1) + 768*(i & 1)}")
    for i in range(0, 8, 2):
        A(f"s_waitcnt lgkmcnt({6-i})")
        for k in (0, 2): A(f"v_pk_add_f32 {R2(PL+4*i+k)}, {R2(PL+4*i+k)}, {R2(PL+4*i+4+k)}")
        if i == 2 or i == 6:
            for k in (0, 2): A(f"v_pk_add_f32 {R2(PL+4*(i-2)+k)}, {R2(PL+4*(i-2)+k)}, {R2(PL+4*i+k)}")
    for k in (0, 2): A(f"v_pk_add_f32 {R2(PL+k)}, {R2(PL+k)}, {R2(PL+16+k)}")
    A(f"v_cvt_pk_bf16_f32 v64, v{PL}, v{PL+1}")
    A(f"v_cvt_pk_bf16_f32 v65, v{PL+2}, v{PL+3}")
    A("v_min_u32 v64, 0xfffffffe, v64"); A("v_min_u32 v65, 0xfffffffe, v65")
    if fast1:
        A(f"s_cmp_eq_u32 {sFAST}, 1")
        A("s_cbranch_scc0 L_slowst")
        A(f"buffer_store_dwordx2 v[64:65], v75, {WS}, s58 offen")
        A("s_branch L_stdone")
        Lb("L_slowst")
    A(f"buffer_store_dwordx2 v[64:65], v75, {WS}, s58 offen {hs}")
    if fast1: Lb("L_stdone")
    A("s_mov_b32 exec_hi, -1")
    if x_tail: st(1)
    A("s_branch L_project")
    Lb("L_gather")
    def poll(lbl, soffs, regs, vaddr, depth, flags):
        nr = len(regs)
        for i in range(nr): A(f"s_mov_b64 s[{72+2*i}:{73+2*i}], -1")
        if depth:
            for r in regs:
                for k in range(4): A(f"v_mov_b32 v{r+k}, -1")
        Lb(lbl)
        for i, r in enumerate(regs):
            A(f"s_mov_b64 exec, s[{72+2*i}:{73+2*i}]")
            A(f"s_cbranch_execz {lbl}_{i}")
            A(f"buffer_load_dwordx4 {R4(r)}, {vaddr}, {WS}, {soffs[i]} offen {flags}")
            Lb(f"{lbl}_{i}")
        A("s_mov_b64 exec, -1")
        A(f"s_add_u32 {sBUD}, {sBUD}, 1")
        A(f"s_waitcnt vmcnt({depth})")
        for i, r in enumerate(regs): A(f"v_max3_u32 v{64+i}, v{r}, v{r+1}, v{r+2}")
        for i, r in enumerate(regs): A(f"v_max_u32 v{64+i}, v{64+i}, v{r+3}")
        for i, r in enumerate(regs): A(f"v_cmp_eq_u32 s[{72+2*i}:{73+2*i}], -1, v{64+i}")
        A(f"s_cmp_gt_u32 {sBUD}, {BUDGET}")
        A(f"s_cbranch_scc1 {lbl}_done")
        A("s_or_b64 s[60:61], s[72:73], s[74:75]" if nr > 1 else "s_cmp_lg_u64 s[72:73], 0")
        for i in range(2, nr): A(f"s_or_b64 s[60:61], s[60:61], s[{72+2*i}:{73+2*i}]")
        A(f"s_cbranch_scc1 {lbl}")
        Lb(f"{lbl}_done")
    if fast1:
        A(f"s_cmp_eq_u32 {sFAST}, 1")
        A("s_cbranch_scc0 L_slowld")
        poll("L_pollf", ["s58"], [PL], "v76", kf, "nt")
        A("s_branch L_lddone")
        Lb("L_slowld")
    poll("L_pollp", ["s58"], [PL], "v76", 0, hs)
    if fast1: Lb("L_lddone")
    if x_tail: st(1)
    A(f"ds_write_b128 v77, {R4(PL)} offset:{L_ARX}")
    A("s_branch L_project")

    Lb("L_tail")
    st(2)
    tail_setup()
    C("final sum over the 32 heads: workgroup w < 160 takes batch pair w&3, column tile w>>2")
    A("s_and_b32 s59, s2, 3"); A("s_lshr_b32 s62, s2, 2")
    A("v_lshrrev_b32 v52, 3, v0"); A("v_mul_u32_u24 v52, 20480, v52"); A("v_and_b32 v53, 7, v0"); A("v_lshl_add_u32 v52, v53, 4, v52")
    A(f"s_lshl_b32 {sT0}, s62, 9"); A(f"s_lshl_b32 {sT1}, s59, 7"); A(f"s_add_u32 {sT0}, {sT0}, {sT1}"); A(f"s_add_u32 s50, {sT0}, {W_R}")
    A("s_add_u32 s51, s50, 163840"); A("s_add_u32 s52, s50, 327680"); A("s_add_u32 s53, s50, 491520")
    A("v_and_b32 v54, 1, v50"); A("v_mul_u32_u24 v54, 1280, v54"); A("v_lshl_add_u32 v54, v53, 2, v54"); A("v_lshrrev_b32 v53, 5, v0"); A("v_lshl_add_u32 v53, v53, 1, v54")
    A("s_mul_i32 s59, s59, 2560"); A("s_lshl_b32 s62, s62, 5"); A("s_add_u32 s59, s59, s62")
    A("s_barrier")
    Lb("L_project")
    C("each wave multiplies the eight rows of o with 16 columns of wo")
    A("v_cmp_gt_u32 vcc, 32, v0")
    A("s_waitcnt lgkmcnt(0)")
    A("s_barrier")
    st(4)
    for m in range(6): A(f"ds_read_b128 {R4(AF+4*m)}, {vAF} offset:{64*m}")
    for m in range(6):
        A(f"s_waitcnt lgkmcnt({5-m})")
        A(f"v_mfma_f32_16x16x32_bf16 v[12:15], {R4(AF+4*m)}, {R4(BF+4*m)}, {'0' if m == 0 else 'v[12:15]'}")
    A("s_nop 7")
    A("v_cndmask_b32 v12, v14, v12, vcc"); A("v_cndmask_b32 v13, v15, v13, vcc")
    A("v_min_u32 v12, 0xfffffffe, v12"); A("v_min_u32 v13, 0xfffffffe, v13")
    A(f"buffer_store_dwordx2 v[12:13], {vRA}, {WS}, s57 offen {hs}")
    st(5)
    A(f"s_cmp_lg_u32 {sWV}, 4")
    A("s_cbranch_scc1 L_fini")
    A("s_cmp_ge_u32 s2, 160")
    A("s_cbranch_scc1 L_fini")
    poll("L_pollr", ["s50", "s51", "s52", "s53"], [PL, PL + 4, PL + 8, PL + 12], "v52", k2, hs)
    if x_tail: st(1)
    Z = 64
    for k in range(4): A(f"v_add_f32 v{Z+k}, v{PL+k}, v{PL+4+k}")
    for k in range(4): A(f"v_add_f32 v{Z+4+k}, v{PL+8+k}, v{PL+12+k}")
    for k in range(4): A(f"v_add_f32 v{Z+k}, v{Z+k}, v{Z+4+k}")
    A("s_nop 0")
    A(f"v_permlane32_swap_b32 v{Z}, v{Z+2}")
    A(f"v_permlane32_swap_b32 v{Z+1}, v{Z+3}")
    A(f"v_add_f32 v{Z}, v{Z}, v{Z+2}"); A(f"v_add_f32 v{Z+1}, v{Z+1}, v{Z+3}")
    A("s_nop 1")
    A(f"v_permlane16_swap_b32 v{Z}, v{Z+1}")
    A(f"v_add_f32 v{Z}, v{Z}, v{Z+1}")
    A("s_nop 1")
    A(f"v_add_f32_dpp v{Z}, v{Z}, v{Z} row_ror:8 row_mask:0xf bank_mask:0xf")
    A(f"v_cvt_pk_bf16_f32 v{Z}, v{Z}, v{Z}")
    A("s_mov_b32 exec_lo, 0x00ff00ff"); A("s_mov_b32 exec_hi, 0x00ff00ff")
    A(f"buffer_store_short v{Z}, v53, {XS}, s59 offen")
    A("s_mov_b64 exec, -1")
    Lb("L_fini")
    if x_diag is not None:
        wv, idx, mul = x_diag
        st(6)
        A("s_waitcnt lgkmcnt(0)")
        A(f"s_cmp_lg_u32 {sWV}, {wv}")
        A("s_cbranch_scc1 L_end")
        A(f"s_sub_u32 s72, s{80+2*idx}, s80")
        A(f"s_mul_i32 s72, s72, {mul}")
        A("s_min_u32 s72, s72, 200000")
        A("s_add_u32 s72, s72, 20000")
        Lb("L_diag")
        A("s_memrealtime s[74:75]")
        A("s_waitcnt lgkmcnt(0)")
        A("s_sub_u32 s74, s74, s80")
        A("s_cmp_lt_u32 s74, s72")
        A("s_cbranch_scc1 L_diag")
    elif stamp:
        st(6)
        A("s_getreg_b32 s94, hwreg(HW_REG_XCC_ID)")
        A("s_waitcnt lgkmcnt(0)")
        A("s_mul_i32 s72, s2, 5"); A(f"s_add_u32 s72, s72, {sWV}"); A("s_lshl_b32 s72, s72, 5"); A(f"s_add_u32 s72, s72, {W_STAMP}")
        for i in range(7): A(f"v_mov_b32 v{12+i}, s{80+2*i}")
        A("s_and_b32 s94, s94, 15")
        A("v_mov_b32 v19, s94"); A("v_mov_b32 v20, 0")
        A("s_mov_b64 exec, 1")
        A(f"buffer_store_dwordx4 v[12:15], v20, {WS}, s72 offen")
        A(f"buffer_store_dwordx4 v[16:19], v20, {WS}, s72 offen offset:16")
    Lb("L_end")
    A("s_endpgm")
    out.append('.section .rodata,"a"')
    out.append(".p2align 6")
    out.append(f".amdhsa_kernel {NAME}")
    for d in ("next_free_vgpr 256", "next_free_sgpr 102", "accum_offset 256", "group_segment_fixed_size 0", "kernarg_size 64",
              "user_sgpr_count 2", "user_sgpr_kernarg_segment_ptr 1", "system_sgpr_workgroup_id_x 1",
              "float_denorm_mode_32 3"):
        out.append("  .amdhsa_" + d)
    out.append(".end_amdhsa_kernel")
    return "\n".join(out) + "\n"


if __name__ == "__main__":
    kw = json.loads(sys.argv[2]) if len(sys.argv) > 2 else {}
    open(sys.argv[1], "w").write(gen(**kw))
```
